```python
import torch

def _softmax(x, axis=-1):
    return torch.softmax(x, dim=axis)

def _gelu(x):
    return torch.nn.functional.gelu(x, approximate='tanh')

def _silu(x):
    return torch.nn.functional.silu(x)

def _sigmoid(x):
    return torch.sigmoid(x)

def _layernorm(x, axis=-1, eps=1e-05):
    m = x.mean(dim=axis, keepdim=True)
    v = x.var(dim=axis, keepdim=True, unbiased=False)
    return (x - m) / torch.sqrt(v + eps)

def _scatter_add(tgt, idx, src, axis=0):
    return tgt.clone().index_add_(axis, idx, src)

def _segment_sum(src, seg, n):
    out = torch.zeros((n,) + src.shape[1:], dtype=src.dtype)
    return out.index_add_(0, seg, src)

def _pad(x, pw):
    flat = tuple((v for pair in reversed(pw) for v in pair))
    return torch.nn.functional.pad(x, flat)
kernel_name = 'concat_heads__memory_aug_recurrent_mem_tr__linear_kernel_hedgehog__prompt'

def setup_inputs():

    _w = lambda a: (lambda t: t.to(torch.bfloat16) if t.is_floating_point() else t)(torch.as_tensor(a))

    def _A_setup():
        B, S, Dm = (1, 2048, 448)
        H, Dh = (16, 256)
        M, seg = (8, 32)
        seg = min(seg, S)
        S = S // seg * seg
        return {'x': _w((lambda *s: torch.randn(*s, dtype=torch.bfloat16) * 0.05)(B, S, Dm)), 'mem0': _w((lambda *s: torch.randn(*s, dtype=torch.bfloat16) * 0.8)(B, M, Dm)), 'Wq': _w((lambda *s: torch.randn(*s, dtype=torch.bfloat16) * 1.6)(Dm, H, Dh) * Dm ** (-0.5)), 'Wk': _w((lambda *s: torch.randn(*s, dtype=torch.bfloat16) * 1.6)(Dm, H, Dh) * Dm ** (-0.5)), 'Wv': _w((lambda *s: torch.randn(*s, dtype=torch.bfloat16) * 0.8)(Dm, H, Dh) * Dm ** (-0.5)), 'Wo': _w((lambda *s: torch.randn(*s, dtype=torch.bfloat16) * 0.8)(H, Dh, Dm) * (H * Dh) ** (-0.5)), 'seg_len': seg}
    _A_in = _A_setup()

    def _B_setup():
        B, S, D, H = (1, 2048, 448, 16)
        Dh = D // H
        return {'x': _w((lambda *s: torch.randn(*s, dtype=torch.bfloat16) * 0.4)(B, S, D)), 'wqkv': _w((lambda *s: torch.randn(*s, dtype=torch.bfloat16) * 0.4)(D, 3 * D)), 'w_phi': _w((lambda *s: torch.randn(*s, dtype=torch.bfloat16) * 0.4)(H, Dh, Dh) * Dh ** (-0.5)), 'wo': _w((lambda *s: torch.randn(*s, dtype=torch.bfloat16) * 0.05)(D, D))}
    _B_in = _B_setup()
    return {'A_x': _A_in['x'], 'A_mem0': _A_in['mem0'], 'A_Wq': _A_in['Wq'], 'A_Wk': _A_in['Wk'], 'A_Wv': _A_in['Wv'], 'A_Wo': _A_in['Wo'], 'A_seg_len': _A_in['seg_len'], 'B_x': _B_in['x'], 'B_wqkv': _B_in['wqkv'], 'B_w_phi': _B_in['w_phi'], 'B_wo': _B_in['wo']}

def reference(A_x, A_mem0, A_Wq, A_Wk, A_Wv, A_Wo, A_seg_len, B_x, B_wqkv, B_w_phi, B_wo):

    def _A_ref(x, mem0, Wq, Wk, Wv, Wo, seg_len):
        B, S, Dm = x.shape
        H, Dh = (Wq.shape[1], Wq.shape[2])
        M = mem0.shape[1]
        scale = Dh ** (-0.5)
        n_seg = S // seg_len
        L = M + seg_len
        idx = torch.arange(L)
        mask = (idx[:, None] < M) | (idx[:, None] >= idx[None, :])
        mem = mem0
        outs = []
        for s in range(n_seg):
            xs = x[:, s * seg_len:(s + 1) * seg_len, :].clone()
            h = torch.concatenate([mem, xs], axis=1)
            q = torch.einsum('btd,dhe->bhte', h, Wq)
            k = torch.einsum('btd,dhe->bhte', h, Wk)
            v = torch.einsum('btd,dhe->bhte', h, Wv)
            scores = torch.einsum('bhqe,bhke->bhqk', q, k) * scale
            scores = torch.where(mask[None, None], scores, -1000000000.0)
            p = _softmax(scores, axis=-1)
            o = torch.einsum('bhqk,bhke->bhqe', p, v)
            o = torch.einsum('bhte,hed->btd', o, Wo)
            mem = o[:, :M, :].clone()
            outs.append(o[:, M:, :])
        return torch.concatenate(outs, axis=1)

    def _B_ref(x, wqkv, w_phi, wo):
        B, S, D = x.shape
        H = 16
        Dh = D // H
        qkv = (lambda x, *d: x.permute(*d))((x @ wqkv).reshape(B, S, 3, H, Dh), 2, 0, 3, 1, 4)
        q, k, v = (qkv[0], qkv[1], qkv[2])
        pq = torch.einsum('bhsd,hdf->bhsf', q, w_phi)
        pk = torch.einsum('bhsd,hdf->bhsf', k, w_phi)
        phi_q = torch.concatenate([_softmax(pq, axis=-1), _softmax(-pq, axis=-1)], axis=-1)
        phi_k = torch.concatenate([_softmax(pk, axis=-1), _softmax(-pk, axis=-1)], axis=-1)
        kv = torch.einsum('bhsf,bhsd->bhfd', phi_k, v)
        z = torch.einsum('bhsf->bhf', phi_k)
        num = torch.einsum('bhqf,bhfd->bhqd', phi_q, kv)
        den = torch.einsum('bhqf,bhf->bhq', phi_q, z)[..., None] + 1e-06
        o = num / den
        return (lambda x, *d: x.permute(*d))(o, 0, 2, 1, 3).reshape(B, S, D) @ wo
    a = _A_ref(A_x, A_mem0, A_Wq, A_Wk, A_Wv, A_Wo, A_seg_len)
    b = _B_ref(B_x, B_wqkv, B_w_phi, B_wo)
    return torch.concatenate([a, b], axis=-1)
```

```python
import re

TRANS = ('v_exp_f32', 'v_log_f32', 'v_rcp_f32', 'v_rsq_f32', 'v_sqrt_f32', 'v_sin_f32', 'v_cos_f32')

_REG_RE = re.compile(r'^(-)?(?:abs\()?\|?([vas])(?:(\d+)|\[(\d+):(\d+)\])\)?\|?$')


def _split_ops(s):
    out, depth, cur = [], 0, ''
    for ch in s:
        if ch in '[(':
            depth += 1
        if ch in '])':
            depth -= 1
        if ch == ',' and depth == 0:
            out.append(cur.strip())
            cur = ''
        else:
            cur += ch
    if cur.strip():
        out.append(cur.strip())
    return out


def _regs_of(tok):
    tok = tok.strip()
    first = tok.split()[0] if tok else ''
    if first in ('vcc',):
        return {('vcc', 0)}
    if first in ('exec',):
        return {('exec', 0)}
    if first == 'm0':
        return {('m0', 0)}
    m = _REG_RE.match(first)
    if not m:
        return set()
    kind = m.group(2)
    if m.group(3) is not None:
        return {(kind, int(m.group(3)))}
    return {(kind, i) for i in range(int(m.group(4)), int(m.group(5)) + 1)}


class Ins:
    __slots__ = ('text', 'mn', 'w', 'r', 'kind', 'passes', 'wide_store', 'states', 'srcc', 'is_dpp', 'ab')

    def __init__(self, text):
        self.text = text
        t = text.split(';')[0].strip()
        parts = t.split(None, 1)
        self.mn = parts[0]
        ops = _split_ops(parts[1]) if len(parts) > 1 else []
        self.w, self.r = set(), set()
        self.passes = 0
        self.wide_store = set()
        self.states = 1
        self.srcc = set()
        self.ab = set()
        self.is_dpp = ('dpp' in self.mn) or ('row_ror' in t) or ('quad_perm' in t) or ('row_shr' in t) or ('row_shl' in t) or ('row_bcast' in t) or ('row_mirror' in t) or ('row_half_mirror' in t)
        mn = self.mn
        R = [_regs_of(o) for o in ops]
        if mn.endswith(':') or mn.startswith('.'):
            self.kind = 'label'
            self.states = 0
        elif mn.startswith('v_mfma') or mn.startswith('v_smfmac'):
            self.kind = 'mfma'
            self.passes = 8 if '32x32' in mn else 4
            self.w = set(R[0])
            self.ab = R[1] | R[2]
            if mn.startswith('v_smfmac'):
                self.ab |= R[3]
                self.srcc = set(R[0])
            else:
                self.srcc = set(R[3]) if len(R) > 3 else set()
            self.r = self.ab | self.srcc
        elif mn.startswith('v_'):
            self.kind = 'valu'
            if mn.startswith('v_permlane'):
                self.w = R[0] | R[1]
                self.r = R[0] | R[1]
            elif mn.startswith('v_cmp'):
                self.w = set(R[0])
                for x in R[1:]:
                    self.r |= x
            elif mn.startswith('v_nop'):
                pass
            else:
                self.w = set(R[0])
                for x in R[1:]:
                    self.r |= x
                if mn.startswith('v_fmac') or mn.startswith('v_pk_fmac'):
                    self.r |= R[0]
                if mn.startswith('v_add_co') or mn.startswith('v_sub_co') or mn.startswith('v_addc_co'):
                    self.w |= R[1]
        elif mn.startswith('buffer_') or mn.startswith('global_'):
            self.kind = 'vmem'
            lds = re.search(r'\blds\b', t) is not None or 'load_lds' in mn
            if 'load' in mn and not lds:
                self.w = set(R[0])
                for x in R[1:]:
                    self.r |= x
            elif 'atomic' in mn:
                for x in R:
                    self.r |= x
                if 'sc0' in t:
                    self.w = set(R[0])
            else:
                for x in R:
                    self.r |= x
                if lds:
                    self.r |= {('m0', 0)}
                if 'store' in mn and ('x3' in mn or 'x4' in mn):
                    self.wide_store = set(R[0]) if mn.startswith('buffer_') else set(R[1])
        elif mn.startswith('ds_'):
            self.kind = 'ds'
            if mn.startswith('ds_read') or mn.startswith('ds_bpermute') or mn.startswith('ds_permute') or mn.startswith('ds_swizzle'):
                self.w = set(R[0])
                for x in R[1:]:
                    self.r |= x
            else:
                for x in R:
                    self.r |= x
        elif mn.startswith('s_'):
            self.kind = 'salu'
            if mn == 's_nop':
                self.states = int(ops[0], 0) + 1
            elif mn.startswith('s_cmp') or mn.startswith('s_cbranch') or mn.startswith('s_branch') or mn in ('s_waitcnt', 's_barrier', 's_endpgm', 's_sleep', 's_setprio'):
                for x in R:
                    self.r |= x
            else:
                if R:
                    self.w = set(R[0])
                for x in R[1:]:
                    self.r |= x
                if 'saveexec' in mn:
                    self.w |= {('exec', 0)}
        else:
            raise ValueError('unknown instruction: ' + text)


def _need(prev, cur):
    n = 0
    vg = lambda S: {x for x in S if x[0] in ('v', 'a')}
    sg = lambda S: {x for x in S if x[0] in ('s', 'vcc')}
    if prev.kind == 'valu':
        pw = vg(prev.w)
        if cur.kind == 'mfma' and pw & cur.r:
            n = max(n, 2)
        if cur.kind == 'valu':
            if cur.mn.startswith('v_permlane') and pw & cur.r:
                n = max(n, 2)
            if cur.is_dpp and pw & cur.r:
                n = max(n, 2)
            if (cur.mn.startswith('v_readlane') or cur.mn.startswith('v_readfirstlane')) and pw & cur.r:
                n = max(n, 1)
            if prev.mn.split('_e')[0] in TRANS and cur.mn.split('_e')[0] not in TRANS and pw & cur.r:
                n = max(n, 1)
            if prev.mn in TRANS and pw & cur.r:
                n = max(n, 1)
        psw = sg(prev.w)
        if psw:
            if cur.kind == 'valu' and psw & cur.r:
                n = max(n, 4 if cur.mn.startswith('v_readlane') or cur.mn.startswith('v_writelane') else 2)
            if cur.kind == 'valu' and ('vcc', 0) in psw and (cur.mn.startswith('v_cndmask') or cur.mn.startswith('v_addc')):
                n = max(n, 2)
            if cur.kind == 'vmem' and psw & cur.r:
                n = max(n, 5)
            if cur.kind == 'salu' and psw & cur.r:
                n = max(n, 1)
    if prev.kind == 'mfma':
        p = prev.passes
        d = prev.w
        if cur.kind == 'mfma':
            if d & cur.ab:
                n = max(n, {4: 8, 8: 12}[p])
            if d & cur.srcc:
                if cur.srcc == d and cur.passes == p:
                    pass
                else:
                    n = max(n, {4: 6, 8: 10}[p])
            elif d & cur.w:
                n = max(n, {4: 8, 8: 12}[p])
        elif cur.kind in ('valu', 'vmem', 'ds'):
            if d & (cur.r | cur.w):
                n = max(n, {4: 8, 8: 12}[p])
            if cur.kind == 'valu' and prev.srcc & cur.w:
                n = max(n, {4: 3, 8: 7}[p])
    if prev.kind == 'vmem' and prev.wide_store:
        if prev.wide_store & cur.w:
            n = max(n, 2)
    if prev.kind == 'salu' and ('m0', 0) in prev.w and cur.kind == 'vmem' and ('m0', 0) in cur.r:
        n = max(n, 1)
    return n


class Asm:
    def __init__(self):
        self.ins = []
        self.vm_seq = 0
        self.lg_seq = 0
        self._lab = 0

    def raw(self, text):
        for line in text.strip('\n').split('\n'):
            s = line.strip()
            if not s or s.startswith(';'):
                continue
            self.op(s)

    def op(self, text):
        i = Ins(text)
        if i.kind != 'label':
            need = 0
            dist = 0
            for prev in reversed(self.ins):
                if dist >= 24:
                    break
                if prev.kind == 'label':
                    continue
                req = _need(prev, i)
                if req - dist > need:
                    need = req - dist
                dist += prev.states
            while need > 0:
                k = min(need, 16)
                self.ins.append(Ins('s_nop %d' % (k - 1)))
                need -= k
        self.ins.append(i)
        if i.kind == 'vmem':
            self.vm_seq += 1
            return self.vm_seq
        if i.kind == 'ds':
            self.lg_seq += 1
            return self.lg_seq
        return None

    def label(self, name):
        self.ins.append(Ins(name + ':'))

    def newlabel(self, base='L'):
        self._lab += 1
        return '%s_%d' % (base, self._lab)

    def wait_vm(self, seq=None):
        n = 0 if seq is None else self.vm_seq - seq
        assert n >= 0
        self.op('s_waitcnt vmcnt(%d)' % min(n, 63))

    def wait_lg(self, seq=None):
        n = 0 if seq is None else self.lg_seq - seq
        assert n >= 0
        self.op('s_waitcnt lgkmcnt(%d)' % min(n, 15))

    def nop(self, n):
        while n > 0:
            k = min(n, 16)
            self.op('s_nop %d' % (k - 1))
            n -= k

    def text(self):
        out = []
        for i in self.ins:
            out.append(i.text if i.kind == 'label' else '    ' + i.text)
        return '\n'.join(out) + '\n'


def vr(b, n=1):
    return 'v%d' % b if n == 1 else 'v[%d:%d]' % (b, b + n - 1)


def ar(b, n=1):
    return 'a%d' % b if n == 1 else 'a[%d:%d]' % (b, b + n - 1)


def sr(b, n=1):
    return 's%d' % b if n == 1 else 's[%d:%d]' % (b, b + n - 1)
```

```python
from asmdsl import Asm, vr, ar, sr
from layout import *

LDS_TR = 0
LDS_SL = 21504
LDS_ROLE = 28416
LDS_WL = 32768
LDS_BYTES = 90112
POLL_LIMIT = 1 << 14

SRD_X = 's[12:15]'
SRD_W = 's[16:19]'
SRD_D = 's[24:27]'
S_WAVE, S_XCC, S_TICK, S_GT, S_CHOSEN, S_CW, S_MODE = 's20', 's21', 's22', 's23', 's28', 's29', 's30'
S_H, S_S, S_STEP, S_XOFF, S_TO = 's31', 's32', 's33', 's34', 's35'
S_T0, S_T1, S_T2, S_T3 = 's36', 's37', 's38', 's39'
S_C, S_RED = 's40', 's41'
S_HF = 's[42:43]'
S_ODD = 's[44:45]'
S_STEPN = 's46'
S_XV = 's47'


def wreg(idx8, vbase):
    i = idx8 * 8
    if i < 256:
        return ar(i, 8), (lambda k: ar(i + k, 4))
    b = vbase + i - 256
    return vr(b, 8), (lambda k: vr(b + k, 4))


def role_assign(a, nwg):
    a.raw(f"""
    s_getreg_b32 {S_XCC}, hwreg(HW_REG_XCC_ID)
    s_and_b32 {S_XCC}, {S_XCC}, 7
    s_cmp_lg_u32 {S_WAVE}, 0
    s_cbranch_scc1 L_role_wait
    s_mov_b64 exec, 1
    v_mov_b32 v4, 1
    s_lshl_b32 {S_T0}, {S_XCC}, 2
    v_mov_b32 v5, {S_T0}
    buffer_atomic_add v4, v5, {SRD_D}, 0 offen sc0 sc1
    s_waitcnt vmcnt(0)
    v_readfirstlane_b32 {S_TICK}, v4
    v_mov_b32 v5, 36
    s_cmp_lg_u32 {S_TICK}, 31
    s_cbranch_scc1 L_role_a
    s_add_u32 {S_T0}, {S_XCC}, 1
    v_mov_b32 v6, {S_T0}
    v_mov_b32 v7, 0
    buffer_atomic_cmpswap v[6:7], v5, {SRD_D}, 0 offen sc0 sc1
    s_waitcnt vmcnt(0)
    """)
    a.label('L_role_a')
    a.raw(f"""
    v_mov_b32 v4, 1
    v_mov_b32 v8, 32
    buffer_atomic_add v4, v8, {SRD_D}, 0 offen sc0 sc1
    s_waitcnt vmcnt(0)
    v_readfirstlane_b32 {S_GT}, v4
    s_mov_b32 {S_TO}, 200000
    s_cmp_lg_u32 {S_GT}, {nwg - 1}
    s_cbranch_scc1 L_role_poll
    """)
    a.label('L_role_fb')
    a.raw(f"""
    v_mov_b32 v6, 100
    v_mov_b32 v7, 0
    buffer_atomic_cmpswap v[6:7], v5, {SRD_D}, 0 offen sc0 sc1
    s_waitcnt vmcnt(0)
    s_mov_b32 {S_TO}, 200000
    """)
    a.label('L_role_poll')
    a.raw(f"""
    buffer_load_dword v4, v5, {SRD_D}, 0 offen sc1
    s_waitcnt vmcnt(0)
    v_readfirstlane_b32 {S_CHOSEN}, v4
    s_cmp_lg_u32 {S_CHOSEN}, 0
    s_cbranch_scc1 L_role_got
    s_sub_u32 {S_TO}, {S_TO}, 1
    s_cmp_lg_u32 {S_TO}, 0
    s_cbranch_scc1 L_role_poll
    s_branch L_role_fb
    """)
    a.label('L_role_got')
    a.raw(f"""
    s_mov_b32 {S_CW}, -1
    s_mov_b32 {S_MODE}, 0
    s_cmp_gt_u32 {S_CHOSEN}, 8
    s_cbranch_scc1 L_role_safe
    s_add_u32 {S_T0}, {S_XCC}, 1
    s_cmp_lg_u32 {S_T0}, {S_CHOSEN}
    s_cbranch_scc1 L_role_pub
    s_cmp_ge_u32 {S_TICK}, 32
    s_cbranch_scc1 L_role_pub
    s_mov_b32 {S_CW}, {S_TICK}
    s_branch L_role_pub
    """)
    a.label('L_role_safe')
    a.raw(f"""
    s_mov_b32 {S_MODE}, 1
    s_cmp_ge_u32 {S_GT}, 32
    s_cbranch_scc1 L_role_pub
    s_mov_b32 {S_CW}, {S_GT}
    """)
    a.label('L_role_pub')
    a.raw(f"""
    v_mov_b32 v4, {S_CW}
    v_mov_b32 v5, {S_MODE}
    v_mov_b32 v6, {S_GT}
    v_mov_b32 v7, 0
    v_mov_b32 v8, {LDS_ROLE}
    ds_write_b128 v8, v[4:7]
    s_waitcnt lgkmcnt(0)
    s_mov_b64 exec, -1
    """)
    a.label('L_role_wait')
    a.raw(f"""
    s_barrier
    v_mov_b32 v8, {LDS_ROLE}
    ds_read_b128 v[4:7], v8
    s_waitcnt lgkmcnt(0)
    v_readfirstlane_b32 {S_CW}, v4
    v_readfirstlane_b32 {S_MODE}, v5
    v_readfirstlane_b32 {S_GT}, v6
    s_barrier
    """)


STAMP = False
LIGHT = False
DRY = False
NOCOLD = False
MERGED = False
RT = False
SECDELAY = 0
DBG_OFF = 200 << 20
def stamp(a, slot, vt):
    if not STAMP or (LIGHT and slot != 0):
        return
    a.op('s_memrealtime s[50:51]' if RT else 's_memtime s[50:51]')
    a.op(f's_lshl_b32 s52, {S_CW}, 2')
    a.op(f's_add_u32 s52, s52, {S_WAVE}')
    a.op(f's_lshl_b32 s52, s52, 6')
    a.op(f's_add_u32 s52, s52, {S_S}')
    a.op(f's_lshl_b32 s52, s52, 5')
    a.op(f's_add_u32 s52, s52, {DBG_OFF + slot * 4}')
    a.op('s_waitcnt lgkmcnt(0)')
    a.op(f'v_mov_b32 v{vt}, s50')
    a.op(f'v_mov_b32 v{vt + 1}, 0')
    a.op('s_mov_b64 exec, 1')
    a.op(f'buffer_store_dword v{vt}, v{vt + 1}, {SRD_W}, s52 offen')
    a.op('s_mov_b64 exec, -1')


PRESLEEP_P = 0
PRESLEEP_S = 0

def poll(a, loads, regs, tmp, tag, sleep=0):
    lp = a.newlabel('L_poll_' + tag)
    ok = a.newlabel('L_ok_' + tag)
    a.op(f's_mov_b32 {S_TO}, {POLL_LIMIT}')
    a.label(lp)
    for l in loads:
        a.op(l)
    a.op('s_waitcnt vmcnt(0)')
    r = list(regs)
    a.op(f'v_max3_u32 v{tmp}, v{r[0]}, v{r[1]}, v{r[2 % len(r)]}')
    k = 3
    while k < len(r):
        a.op(f'v_max3_u32 v{tmp}, v{tmp}, v{r[k]}, v{r[min(k + 1, len(r) - 1)]}')
        k += 2
    a.op(f'v_cmp_eq_u32 vcc, -1, v{tmp}')
    a.op(f's_cbranch_vccz {ok}')
    if sleep:
        a.op(f's_sleep {sleep}')
    a.op(f's_sub_u32 {S_TO}, {S_TO}, 1')
    a.op(f's_cmp_lg_u32 {S_TO}, 0')
    a.op(f's_cbranch_scc1 {lp}')
    a.label(ok)


GAP = 3
NSE = 4
SECFLAG = 0
NP = 0
DMALATE = 0
DMAPRE = 4
PSLEEP = 10

def ppoll(a, mk, bases, n, tmp, use, tag, gap=None):
    nl = len(mk(bases[0]))
    lp, ua, ub, done = (a.newlabel(x + tag) for x in ('L_pp_', 'L_ppa_', 'L_ppb_', 'L_ppd_'))

    def chk(b, target):
        r = list(range(b, b + n))
        a.op(f'v_max3_u32 v{tmp}, v{r[0]}, v{r[1]}, v{r[2]}')
        k = 3
        while k < len(r):
            a.op(f'v_max3_u32 v{tmp}, v{tmp}, v{r[k]}, v{r[min(k + 1, len(r) - 1)]}')
            k += 2
        a.op(f'v_cmp_eq_u32 vcc, -1, v{tmp}')
        a.op(f's_cbranch_vccz {target}')
    a.op(f's_mov_b32 {S_TO}, {POLL_LIMIT}')
    for l in mk(bases[0]):
        a.op(l)
    a.op(f's_sleep {GAP}')
    a.label(lp)
    for l in mk(bases[1]):
        a.op(l)
    a.op(f's_waitcnt vmcnt({nl})')
    chk(bases[0], ua)
    for l in mk(bases[0]):
        a.op(l)
    a.op(f's_waitcnt vmcnt({nl})')
    chk(bases[1], ub)
    a.op(f's_sub_u32 {S_TO}, {S_TO}, 1')
    a.op(f's_cmp_lg_u32 {S_TO}, 0')
    a.op(f's_cbranch_scc1 {lp}')
    a.label(ub)
    sv = a.lg_seq
    use(bases[1])
    a.op(f's_branch {done}')
    a.label(ua)
    a.lg_seq = sv
    use(bases[0])
    a.label(done)


def flagwait(a, vaddr, vt, starget, tag):
    lp = a.newlabel('L_fl_' + tag)
    ok = a.newlabel('L_flok_' + tag)
    a.op(f's_mov_b32 {S_TO}, {POLL_LIMIT}')
    a.label(lp)
    a.op(f'buffer_load_dword v{vt}, v{vaddr}, {SRD_W}, 0 offen sc1')
    a.op('s_waitcnt vmcnt(0)')
    a.op(f'v_cmp_gt_u32 vcc, {0 if DRY else starget}, v{vt}')
    a.op(f's_cbranch_vccz {ok}')
    a.op(f's_sub_u32 {S_TO}, {S_TO}, 1')
    a.op(f's_cmp_lg_u32 {S_TO}, 0')
    a.op(f's_cbranch_scc1 {lp}')
    a.label(ok)


def common_addr(a):
    a.raw(f"""
    v_lshrrev_b32 v3, 4, v0
    v_and_b32 v4, 15, v0
    v_mov_b32 v1, 0x4444
    v_mov_b32 v2, 0xeeee
    v_and_b32 v5, 8, v0
    v_cmp_ne_u32 vcc, 0, v5
    v_cndmask_b32 v1, v1, v2, vcc
    v_lshlrev_b32 v2, 4, v0
    v_add_u32 v5, 0x1000, v2
    s_mov_b32 s42, 0xff00ff00
    s_mov_b32 s43, 0xff00ff00
    s_mov_b32 s44, 0xaaaaaaaa
    s_mov_b32 s45, 0xaaaaaaaa
    """)
    a.raw(f"""
    s_lshr_b32 {S_T0}, {S_H}, 2
    s_lshl_b32 {S_T0}, {S_T0}, 10
    s_and_b32 {S_T2}, {S_H}, 2
    s_lshl_b32 {S_T2}, {S_T2}, 8
    s_add_u32 {S_T0}, {S_T0}, {S_T2}
    s_and_b32 {S_T2}, {S_H}, 1
    s_lshl_b32 {S_T2}, {S_T2}, 2
    s_add_u32 {S_T0}, {S_T0}, {S_T2}
    s_add_u32 {S_T0}, {S_T0}, {UB}
    v_and_b32 v9, 1, v3
    v_lshlrev_b32 v9, 8, v9
    v_lshl_add_u32 v9, v4, 4, v9
    v_lshrrev_b32 v10, 1, v3
    v_lshl_add_u32 v9, v10, 3, v9
    v_add_u32 v9, {S_T0}, v9
    """)


def load_tile(a, rowsreg_s, dst, vtmp):
    a.raw(f"""
    v_add_u32 v{vtmp}, {rowsreg_s}, v4
    s_movk_i32 {S_T3}, 896
    v_mul_lo_u32 v{vtmp}, v{vtmp}, {S_T3}
    v_lshl_add_u32 v{vtmp}, v3, 5, v{vtmp}
    """)
    for t in range(7):
        for hf in range(2):
            a.op(f'buffer_load_dwordx4 {dst(t, hf)}, v{vtmp}, {SRD_W}, 0 offen offset:{t * 128 + hf * 16}')


class Sched:
    def __init__(self, a, k=2):
        self.a, self.k, self.n, self.q = a, k, 0, []

    def fill(self, ops, after=0, cb=None):
        for o in ops:
            self.q.append((self.n + after, o))

    def _emit(self, o):
        if callable(o):
            o()
        else:
            self.a.op(o)

    def mfma(self, text):
        self.a.op(text)
        self.n += 1
        c = 0
        while self.q and c < self.k and self.q[0][0] <= self.n:
            self._emit(self.q.pop(0)[1])
            c += 1

    def flush(self):
        while self.q:
            self._emit(self.q.pop(0)[1])


def presum(a, d):
    a.op(f'v_permlane32_swap_b32 v{d}, v{d + 2}')
    a.op(f'v_permlane32_swap_b32 v{d + 1}, v{d + 3}')
    a.op(f'v_add_f32 v{d}, v{d}, v{d + 2}')
    a.op(f'v_add_f32 v{d + 1}, v{d + 1}, v{d + 3}')


def zero4(a, d):
    for k in range(4):
        a.op(f'v_mov_b32 v{d + k}, 0')


def xreduce(a, op, v, t1, t2):
    a.op(f'{op}_dpp v{t1}, v{v}, v{v} row_ror:8 row_mask:0xf bank_mask:0xf')
    a.op(f'v_mov_b32 v{t2}, v{t1}')
    a.op(f'v_permlane16_swap_b32 v{t1}, v{t2}')
    a.op(f'{op} v{t1}, v{t1}, v{t2}')
    a.op(f'v_mov_b32 v{t2}, v{t1}')
    a.op(f'v_permlane32_swap_b32 v{t1}, v{t2}')
    a.op(f'{op} v{v}, v{t1}, v{t2}')


LDS_MEM = 14336
LDS_RR = 0


def stage_a(a, AF, tmp, tmpb, chk, tag, vfm, useflag=True):
    def mk(b):
        return [f'buffer_load_dwordx4 {vr(b, 4)}, v5, {SRD_W}, {S_STEP} offen sc1',
                f'buffer_load_dwordx4 {vr(b + 4, 4)}, v5, {SRD_W}, {S_Q2} offen sc1']

    def use(b):
        a.op(f'ds_write_b128 v5, {vr(b, 4)} offset:{LDS_MEM}')
        a.op(f'ds_write_b128 v{VQ2}, {vr(b + 4, 4)} offset:{LDS_MEM}')
    a.op(f's_add_u32 {S_Q2}, {S_STEP}, {S_QD}')
    if useflag:
        flagwait(a, vfm, chk, S_S, tag)
    ppoll(a, mk, (tmp, tmpb), 8, chk, use, tag)
    a.op('s_waitcnt lgkmcnt(0)')
    a.op('s_barrier')
    qs = []
    for t in range(7):
        qs.append(a.op(f'ds_read_b128 {vr(AF + 4 * t, 4)}, v2 offset:{LDS_MEM + t * 1024}'))
    return qs


S_Q2, S_QD = 's48', 's49'
S_PREV, S_NEXT, S_AR = 's53', 's54', 's55'
VQ2 = 3


def ring(a):
    a.raw(f"""
    s_and_b32 {S_T0}, {S_S}, 3
    s_mul_i32 {S_STEP}, {S_T0}, {STEP}
    s_add_u32 {S_STEP}, {S_STEP}, {HB_OFF}
    s_add_u32 {S_T0}, {S_S}, 3
    s_and_b32 {S_T0}, {S_T0}, 3
    s_mul_i32 {S_PREV}, {S_T0}, {STEP}
    s_add_u32 {S_PREV}, {S_PREV}, {HB_OFF}
    s_add_u32 {S_T0}, {S_S}, 1
    s_and_b32 {S_T0}, {S_T0}, 3
    s_mul_i32 {S_NEXT}, {S_T0}, {STEP}
    s_add_u32 {S_NEXT}, {S_NEXT}, {HB_OFF}
    s_mul_i32 {S_AR}, {S_S}, {ARSTEP}
    s_add_u32 {S_AR}, {S_AR}, {AR_OFF}
    """)


def wait_x0(a, vt, tag):
    if not MERGED:
        return
    lp, ok = a.newlabel('L_x0_' + tag), a.newlabel('L_x0ok_' + tag)
    a.op(f'v_min_u32 v{vt + 3}, 48, v2')
    a.op(f'v_lshlrev_b32 v{vt + 3}, 3, v{vt + 3}')
    a.op(f'v_add_u32 v{vt + 3}, {CNT_X}, v{vt + 3}')
    a.op(f's_mov_b32 {S_TO}, 2000000')
    a.label(lp)
    a.op(f'buffer_load_dword v{vt}, v{vt + 3}, {SRD_W}, 0 offen sc1')
    a.op('s_waitcnt vmcnt(0)')
    a.op(f'v_cmp_gt_u32 vcc, 28, v{vt}')
    a.op(f's_cbranch_vccz {ok}')
    a.op('s_sleep 4')
    a.op(f's_sub_u32 {S_TO}, {S_TO}, 1')
    a.op(f's_cmp_lg_u32 {S_TO}, 0')
    a.op(f's_cbranch_scc1 {lp}')
    a.label(ok)


def quarter_setup(a):
    a.raw(f"""
    s_lshl_b32 {S_T0}, {S_WAVE}, 10
    v_add_u32 v5, {S_T0}, v2
    s_cmp_lt_u32 {S_WAVE}, 3
    s_cselect_b32 {S_QD}, 4096, 0
    v_add_u32 v3, {S_QD}, v5
    """)


def primary(a, sc, tag):
    AF, MN, XB, UACC, TACC, SACC, TA = 16, 44, 54, 74, 86, 98, 110
    WB = 120
    VMN = (6, 15, None, 9)
    for p in range(2):
        vd = VMN[p]
        a.raw(f"""
        s_mul_i32 {S_T0}, {S_WAVE}, 10
        s_add_u32 {S_T0}, {S_T0}, {4 * p}
        v_add_u32 v10, {S_T0}, v3
        v_lshrrev_b32 v{vd}, 3, v10
        v_lshlrev_b32 v{vd}, 10, v{vd}
        v_bfe_u32 v11, v10, 2, 1
        v_lshl_add_u32 v{vd}, v11, 8, v{vd}
        v_and_b32 v11, 1, v10
        v_lshl_add_u32 v{vd}, v11, 9, v{vd}
        v_bfe_u32 v11, v10, 1, 1
        v_lshl_add_u32 v{vd}, v11, 3, v{vd}
        v_and_b32 v11, 7, v4
        v_lshl_add_u32 v{vd}, v11, 4, v{vd}
        v_add_u32 v{vd}, {LDS_MEM}, v{vd}
        """)
    vd = VMN[3]
    a.raw(f"""
    s_mul_i32 {S_T0}, {S_WAVE}, 10
    s_add_u32 {S_T0}, {S_T0}, 8
    v_lshrrev_b32 v10, 1, v3
    v_add_u32 v10, {S_T0}, v10
    v_lshrrev_b32 v{vd}, 3, v10
    v_lshlrev_b32 v{vd}, 10, v{vd}
    v_bfe_u32 v11, v10, 2, 1
    v_lshl_add_u32 v{vd}, v11, 8, v{vd}
    v_and_b32 v11, 1, v10
    v_lshl_add_u32 v{vd}, v11, 9, v{vd}
    v_bfe_u32 v11, v10, 1, 1
    v_lshl_add_u32 v{vd}, v11, 3, v{vd}
    v_and_b32 v11, 1, v3
    v_lshl_add_u32 v{vd}, v11, 2, v{vd}
    v_and_b32 v11, 7, v4
    v_lshl_add_u32 v{vd}, v11, 4, v{vd}
    v_add_u32 v{vd}, {LDS_MEM}, v{vd}
    """)
    a.raw(f"""
    s_mul_i32 {S_T0}, {S_WAVE}, 7168
    s_add_u32 {S_T0}, {S_T0}, {XF_OFF}
    s_movk_i32 {S_T3}, 896
    v_add_u32 v7, {S_T0}, v2
    v_add_u32 v8, 2560, v7
    v_lshlrev_b32 v114, 3, v0
    v_add_u32 v114, {S_T0}, v114
    v_add_u32 v114, 2048, v114
    v_add_u32 v115, 2560, v114
    v_and_b32 v14, 1, v3
    v_lshlrev_b32 v14, 3, v14
    v_lshrrev_b32 v10, 1, v3
    v_lshl_add_u32 v14, v10, 2, v14
    v_lshl_add_u32 v14, v4, 4, v14
    s_mul_i32 {S_T0}, {S_H}, 7168
    s_lshl_b32 {S_T1}, {S_WAVE}, 9
    s_add_u32 {S_T0}, {S_T0}, {S_T1}
    s_add_u32 {S_T0}, {S_T0}, {AR_U + 20 * 256}
    v_add_u32 v14, {S_T0}, v14
    s_lshl_b32 s67, {S_H}, 2
    s_add_u32 s67, s67, {S_WAVE}
    s_mul_i32 s67, s67, 1536
    s_add_u32 s67, s67, {SP}
    s_mul_i32 {S_T0}, {S_WAVE}, 3584
    v_lshlrev_b32 v10, 5, v4
    v_lshl_add_u32 v10, v3, 3, v10
    v_add_u32 v10, {S_T0}, v10
    v_lshlrev_b32 v11, 8, v3
    v_lshl_add_u32 v11, v4, 3, v11
    v_add_u32 v11, {S_T0}, v11
    """)
    a.raw(f"""
    v_and_b32 v12, 1, v3
    v_lshlrev_b32 v12, 2, v12
    v_lshrrev_b32 v116, 1, v3
    v_lshl_add_u32 v12, v116, 1, v12
    s_lshl_b32 {S_T0}, {S_WAVE}, 3
    v_add_u32 v12, {S_T0}, v12
    v_mul_u32_u24 v12, 208, v12
    v_lshl_add_u32 v12, v4, 2, v12
    v_add_u32 v12, {LDS_SL}, v12
    """)
    a.raw(f"""
    v_and_b32 v13, 7, v0
    v_lshrrev_b32 v118, 3, v0
    v_mul_u32_u24 v116, 208, v118
    v_lshl_add_u32 v119, v13, 2, v116
    v_add_u32 v119, {LDS_SL + 128}, v119
    v_lshl_add_u32 v116, v13, 4, v116
    v_add_u32 v116, {LDS_SL}, v116
    s_lshr_b32 {S_T0}, {S_H}, 1
    s_lshl_b32 {S_T0}, {S_T0}, 10
    s_and_b32 {S_T1}, {S_H}, 1
    s_lshl_b32 {S_T1}, {S_T1}, 7
    s_add_u32 {S_T0}, {S_T0}, {S_T1}
    s_add_u32 {S_T0}, {S_T0}, {PX}
    v_lshrrev_b32 v117, 1, v13
    v_lshlrev_b32 v117, 8, v117
    v_lshl_add_u32 v117, v118, 4, v117
    v_and_b32 v113, 1, v13
    v_lshl_add_u32 v117, v113, 3, v117
    v_add_u32 v117, {S_T0}, v117
    s_lshr_b32 {S_T0}, {S_H}, 1
    s_lshl_b32 {S_T0}, {S_T0}, 8
    s_and_b32 {S_T1}, {S_H}, 1
    s_lshl_b32 {S_T1}, {S_T1}, 3
    s_add_u32 {S_T0}, {S_T0}, {S_T1}
    s_add_u32 {S_T0}, {S_T0}, {PM}
    v_lshlrev_b32 v118, 4, v118
    v_bfe_u32 v113, v13, 1, 1
    v_lshl_add_u32 v118, v113, 7, v118
    v_lshrrev_b32 v113, 2, v13
    v_lshl_add_u32 v118, v113, 2, v118
    v_add_u32 v118, {S_T0}, v118
    """)
    a.raw(f"""
    v_mov_b32 v16, 0
    v_mov_b32 v17, 0
    v_mov_b32 v18, 0
    v_mov_b32 v19, 0
    ds_write_b128 v2, v[16:19] offset:{LDS_SL}
    ds_write_b128 v2, v[16:19] offset:{LDS_SL + 1024}
    s_lshl_b32 {S_RED}, {S_H}, 2
    s_add_u32 {S_RED}, {S_RED}, {FLR_P}
    """)
    for tl in range(7):
        a.raw(f"""
        s_mul_i32 {S_T0}, {S_H}, 896
        s_mul_i32 {S_T1}, {S_WAVE}, {80 if tl < 5 else 32}
        s_add_u32 {S_T0}, {S_T0}, {S_T1}
        s_add_u32 {S_T0}, {S_T0}, {tl * 16 if tl < 5 else 448 + 320 + (tl - 5) * 16}
        """)
        load_tile(a, S_T0, lambda t, hf, tl=tl: wreg(tl * 7 + t, WB)[1](hf * 4), 13)
        if tl == 6:
            a.op('s_waitcnt vmcnt(0)')
    a.op(f's_mul_i32 {S_T0}, {S_WAVE}, 3584')
    a.op(f'v_lshlrev_b32 v4, 3, v0')
    a.op('v_mov_b32 v82, v4')
    a.op(f'v_add_u32 v4, {S_T0}, v4')
    quarter_setup(a)
    a.op('v_min_u32 v0, 27, v0')
    a.op('v_lshlrev_b32 v0, 2, v0')
    a.op(f's_lshl_b32 {S_T0}, {S_H}, 8')
    a.op(f's_add_u32 {S_T0}, {S_T0}, {FLR_M}')
    a.op(f'v_add_u32 v0, {S_T0}, v0')

    def xbr(kt, p):
        return XB + kt * 10 + 4 * p

    def xb_prefetch():
        for kt in range(2):
            for p in range(2):
                a.op(f'buffer_load_dwordx4 {vr(xbr(kt, p), 4)}, v{7 + kt}, {SRD_W}, {S_XOFF} offen offset:{p * 1024}')
            a.op(f'buffer_load_dwordx2 {vr(xbr(kt, 2), 2)}, v{114 + kt}, {SRD_W}, {S_XOFF} offen')

    if MERGED:
        a.op('s_mov_b32 s65, 0')
    wait_x0(a, AF, 'p' + tag)
    a.op(f's_mov_b32 {S_XOFF}, 0')
    xb_prefetch()
    a.op(f's_mov_b32 {S_S}, 0')
    ring(a)
    a.op(f's_lshl_b32 {S_T0}, {S_H}, 2')
    a.op(f's_add_u32 {S_T0}, {S_T0}, {S_WAVE}')
    a.op(f's_mul_i32 s66, {S_H}, 28672')
    a.op(f's_mul_i32 {S_T1}, {S_WAVE}, {(7 - NSE) * 1024}')
    a.op(f's_add_u32 s66, s66, {S_T1}')
    a.op(f's_add_u32 s66, s66, {XVOP_OFF + 2 * 28 * 16384 + 4 * NSE * 1024}')
    a.op(f's_mul_i32 {S_XV}, {S_H}, 28672')
    a.op(f's_mul_i32 {S_T1}, {S_WAVE}, {NP * 1024}')
    a.op(f's_add_u32 {S_XV}, {S_XV}, {S_T1}')
    a.op(f's_add_u32 {S_XV}, {S_XV}, {XVOP_OFF + 2 * 28 * 16384 - NP * 1024}')
    a.op(f's_mul_i32 {S_C}, {S_T0}, 1792')
    a.op(f's_add_u32 {S_C}, {S_C}, {ARSTEP + AR_U}')
    a.op(f's_mul_i32 s59, {S_T0}, 448')
    a.op(f's_add_u32 s59, s59, {XF_OFF + 28672}')
    loop = f'L_prim_loop_{tag}'
    a.label(loop)
    a.nop(8)
    for k in range(3):
        zero4(a, TACC + 4 * k)
    zero4(a, SACC + 8)
    zero4(a, UACC)
    zero4(a, UACC + 4)
    a.op(f'v_mov_b32 v{TACC + 8}, {0 if DRY else -1}')
    a.op(f'v_mov_b32 v{TACC + 9}, {0 if DRY else -1}')
    qa = stage_a(a, AF, MN, SACC, 13, 'pm' + tag, 0)
    stamp(a, 0, TA)
    nra = f'L_prim_nora_{tag}'
    a.op(f's_cmp_lg_u32 {S_WAVE}, 0')
    a.op(f's_cbranch_scc1 {nra}')
    a.op(f'buffer_store_dwordx2 {vr(TACC + 8, 2)}, v117, {SRD_W}, {S_PREV} offen{sc}')
    a.op(f'buffer_store_dword v{TACC + 8}, v118, {SRD_W}, {S_PREV} offen{sc}')
    a.label(nra)
    PRE_T = 1

    def prim_pub():
        CP = AF
        le = a.newlabel('L_ppe')
        a.op(f's_cmp_lg_u32 {S_WAVE}, 3')
        a.op(f's_cbranch_scc1 {le}')
        a.op('s_cmp_lg_u32 s65, 0')
        a.op(f's_cbranch_scc1 {le}')
        a.op(f'v_mov_b32 v{CP + 5}, 0')
        a.op(f's_add_u32 {S_T0}, {S_S}, 4')
        a.op(f's_min_u32 {S_T0}, {S_T0}, 63')
        a.op(f's_lshl_b32 {S_T0}, {S_T0}, 7')
        a.op(f's_add_u32 {S_T0}, {S_T0}, {CNT_X}')
        a.op(f's_mov_b32 {S_T1}, {CNT_XALL}')
        lp, ok = a.newlabel('L_xc'), a.newlabel('L_xcok')
        a.op(f's_mov_b32 {S_TO}, 2000000')
        a.label(lp)
        a.op(f'buffer_load_dword v{CP + 6}, v{CP + 5}, {SRD_W}, {S_T0} offen sc1')
        a.op(f'buffer_load_dword v{CP + 7}, v{CP + 5}, {SRD_W}, {S_T1} offen sc1')
        a.op('s_waitcnt vmcnt(0)')
        a.op(f'v_readfirstlane_b32 {S_T2}, v{CP + 7}')
        a.op(f's_cmp_ge_u32 {S_T2}, 224')
        a.op('s_cselect_b32 s65, 1, 0')
        a.op(f'v_cmp_gt_u32 vcc, 28, v{CP + 6}')
        a.op(f's_cbranch_vccz {ok}')
        a.op('s_sleep 4')
        a.op(f's_sub_u32 {S_TO}, {S_TO}, 1')
        a.op(f's_cmp_lg_u32 {S_TO}, 0')
        a.op(f's_cbranch_scc1 {lp}')
        a.label(ok)
        a.label(le)

    def wide_touch():
        lw = a.newlabel('L_wt')
        a.op(f's_cmp_eq_u32 {S_WAVE}, 0')
        a.op(f's_cbranch_scc1 {lw}')
        for i in range(NP):
            if i % 4 == 0:
                a.op(f's_add_u32 {S_T1}, {S_XV}, {i * 1024}')
            a.op(f'buffer_load_dwordx4 v[116:119], v2, {SRD_W}, {S_T1} offen offset:{(i % 4) * 1024}')
        a.label(lw)
        a.op(f's_add_u32 {S_XV}, {S_XV}, {28 * 16384}')

    S = Sched(a, 2)
    seqs = {}
    XTRA = SACC + 8
    ACCS = [TACC, TACC + 4, TACC + 8, XTRA]

    def accof(tl):
        return [TACC, TACC + 4, TACC + 8, XTRA, TACC, UACC, UACC + 4][tl]

    def smf(tl, t):
        S.mfma(f'v_smfmac_f32_16x16x64_bf16 {vr(accof(tl), 4)}, {vr(AF + 4 * t, 4)}, {wreg(tl * 7 + t, WB)[0]}, v1')

    def post_ops(tl):
        acc = accof(tl)
        return [f'v_cvt_pk_bf16_f32 v{acc}, v{acc}, v{acc + 1}',
                f'v_cvt_pk_bf16_f32 v{acc + 1}, v{acc + 2}, v{acc + 3}',
                f'ds_write_b64 v10, {vr(acc, 2)} offset:{tl * 512}']

    def zero_ops(tl):
        acc = accof(tl)
        return [f'v_mov_b32 v{acc + k}, 0' for k in range(4)]

    def tr_ops(p):
        def second():
            seqs[p] = a.op(f'ds_read_b64_tr_b16 {vr(TA + 2, 2)}, v11 offset:{p * 1024 + 128}')
        return [f'ds_read_b64_tr_b16 {vr(TA, 2)}, v11 offset:{p * 1024}', second]

    def smm(p):
        S.flush()
        a.wait_lg(seqs[p])
        for kt in range(3):
            B = vr(xbr(kt, p), 4) if kt < 2 else vr(MN + 4 * p, 4)
            S.mfma(f'v_mfma_f32_16x16x32_bf16 {vr(SACC + 4 * kt, 4)}, {vr(TA, 4)}, {B}, {vr(SACC + 4 * kt, 4)}')

    zero4(a, TACC + 8)
    mn = []
    for p in range(2):
        mn.append(f'ds_read2_b32 {vr(MN + 4 * p, 2)}, v{VMN[p]} offset0:0 offset1:32')
        mn.append(f'ds_read2_b32 {vr(MN + 4 * p + 2, 2)}, v{VMN[p]} offset0:1 offset1:33')
    mn.append(f'ds_read2_b32 {vr(MN + 8, 2)}, v{VMN[3]} offset0:0 offset1:32')
    S.k = 1
    for t in range(7):
        a.wait_lg(qa[t])
        if t == 4:
            S.fill(['s_waitcnt vmcnt(0)'] + mn + [f'v_mov_b32 v{SACC + k}, 0' for k in range(8)])
        for tl in range(3):
            smf(tl, t)
    S.k = 2
    S.fill(post_ops(0) + zero_ops(4) + post_ops(1) + tr_ops(0), after=2)
    for t in range(7):
        smf(3, t)
    S.flush()
    S.fill(post_ops(2))
    for t in range(7):
        smf(4, t)
        if t == 2:
            S.fill(post_ops(3) + zero_ops(3))
    smm(0)
    for o in tr_ops(1):
        S._emit(o)
    for o in post_ops(4):
        a.op(o)
    TB = TACC + 4
    SPR = TACC + 6
    q3 = a.op(f'ds_read_b64_tr_b16 {vr(TB, 2)}, v4 offset:2048')
    a.op(f's_add_u32 {S_T0}, {S_STEP}, s67')
    sploads = [f'buffer_load_dwordx4 {vr(SPR, 4)}, v2, {SRD_W}, {S_T0} offen sc1',
               f'buffer_load_dwordx2 {vr(SPR + 4, 2)}, v82, {SRD_W}, {S_T0} offen offset:1024 sc1']
    smf(5, 0)
    smf(5, 1)
    smm(1)
    a.wait_lg(q3)
    for kt in range(3):
        B = vr(xbr(kt, 2), 2) if kt < 2 else vr(MN + 8, 2)
        a.op(f'v_mfma_f32_16x16x16_bf16 {vr(SACC + 4 * kt, 4)}, {vr(TB, 2)}, {B}, {vr(SACC + 4 * kt, 4)}')
    for l in sploads:
        a.op(l)
    for t in range(2, 7):
        smf(5, t)
    for kt in range(3):
        presum(a, SACC + 4 * kt)
    okl = a.newlabel('L_spok')
    a.op('s_waitcnt vmcnt(0)')
    a.op(f'v_max3_u32 v13, v{SPR}, v{SPR + 1}, v{SPR + 2}')
    a.op(f'v_max3_u32 v13, v13, v{SPR + 3}, v{SPR + 4}')
    a.op(f'v_max_u32 v13, v13, v{SPR + 5}')
    a.op('v_cmp_eq_u32 vcc, -1, v13')
    a.op(f's_cbranch_vccz {okl}')
    poll(a, sploads, list(range(SPR, SPR + 6)), 13, 'sp' + tag)
    a.label(okl)
    for kt in range(3):
        a.op(f'v_pk_add_f32 {vr(SACC + 4 * kt, 2)}, {vr(SACC + 4 * kt, 2)}, {vr(SPR + 2 * kt, 2)}')
        a.op(f'ds_write_b32 v12, v{SACC + 4 * kt} offset:{kt * 64}')
        a.op(f'ds_write_b32 v12, v{SACC + 4 * kt + 1} offset:{kt * 64 + 208}')

    def umf():
        for t in range(7):
            a.op(f'v_smfmac_f32_16x16x64_bf16 {vr(UACC + 4, 4)}, {vr(AF + 4 * t, 4)}, {wreg(6 * 7 + t, WB)[0]}, v1')

    def ufinish(mf=True):
        if mf:
            umf()
        for u in range(2):
            d = UACC + 4 * u
            presum(a, d)
            a.op(f'v_cvt_pk_bf16_f32 v{d}, v{d}, v{d + 1}')
            a.op(f'buffer_store_dword v{d}, v14, {SRD_W}, {S_AR} offen offset:{u * 256}{sc}')
    a.op('s_waitcnt lgkmcnt(0)')
    stamp(a, 1, TA)
    a.op('s_barrier')
    skip = f'L_prim_nosm_{tag}'
    sm = f'L_prim_sm_{tag}'
    a.op(f's_cmp_eq_u32 {S_WAVE}, 0')
    a.op(f's_cbranch_scc1 {sm}')
    ufinish()
    a.op(f's_sleep {PSLEEP}')
    if MERGED:
        prim_pub()
    a.op(f's_branch {skip}')
    a.label(sm)
    G = 44
    M, T1, T2, Z = G + 5, G + 6, G + 7, G + 8
    Lr = 54
    for w in range(4):
        a.op(f'ds_read_b128 {vr(Lr + 4 * w, 4)}, v116 offset:{w * 1664}')
    for w in range(4):
        a.op(f'ds_read_b32 v{Lr + 16 + w}, v119 offset:{w * 1664}')
    a.op(f's_add_u32 {S_T0}, {S_S}, 1')
    a.op(f'v_mov_b32 v{Z}, {S_T0}')
    a.op(f'v_lshlrev_b32 v{Z + 1}, 4, v2')
    a.op('s_mov_b64 exec, 0xffff')
    a.op(f'buffer_store_dword v{Z}, v{Z + 1}, {SRD_W}, {S_RED} offen{sc}')
    a.op('s_mov_b64 exec, -1')
    umf()
    a.op('s_waitcnt lgkmcnt(0)')
    stamp(a, 2, TA)
    a.op(f'v_pk_add_f32 {vr(Lr, 2)}, {vr(Lr, 2)}, {vr(Lr + 4, 2)}')
    a.op(f'v_pk_add_f32 {vr(Lr + 2, 2)}, {vr(Lr + 2, 2)}, {vr(Lr + 6, 2)}')
    a.op(f'v_pk_add_f32 {vr(Lr + 8, 2)}, {vr(Lr + 8, 2)}, {vr(Lr + 12, 2)}')
    a.op(f'v_pk_add_f32 {vr(Lr + 10, 2)}, {vr(Lr + 10, 2)}, {vr(Lr + 14, 2)}')
    a.op(f'v_pk_add_f32 {vr(Lr + 16, 2)}, {vr(Lr + 16, 2)}, {vr(Lr + 18, 2)}')
    a.op(f'v_pk_add_f32 {vr(G, 2)}, {vr(Lr, 2)}, {vr(Lr + 8, 2)}')
    a.op(f'v_pk_add_f32 {vr(G + 2, 2)}, {vr(Lr + 2, 2)}, {vr(Lr + 10, 2)}')
    a.op(f'v_add_f32 v{G + 4}, v{Lr + 16}, v{Lr + 17}')
    a.op(f'v_max3_f32 v{M}, v{G}, v{G + 1}, v{G + 2}')
    a.op(f'v_max3_f32 v{M}, v{M}, v{G + 3}, v{G + 4}')
    for dpp in ('quad_perm:[1,0,3,2]', 'quad_perm:[2,3,0,1]', 'row_half_mirror'):
        a.op(f'v_max_f32_dpp v{M}, v{M}, v{M} {dpp} row_mask:0xf bank_mask:0xf')
    for i in range(5):
        a.op(f'v_sub_f32 v{G + i}, v{G + i}, v{M}')
    for i in range(5):
        a.op(f'v_exp_f32 v{G + i}, v{G + i}')
    a.op(f'v_add_f32 v{M}, v{G}, v{G + 1}')
    a.op(f'v_add_f32 v{T1}, v{G + 2}, v{G + 3}')
    a.op(f'v_add3_f32 v{M}, v{M}, v{G + 4}, v{T1}') if False else (a.op(f'v_add_f32 v{M}, v{M}, v{G + 4}'), a.op(f'v_add_f32 v{M}, v{M}, v{T1}'))
    for dpp in ('quad_perm:[1,0,3,2]', 'quad_perm:[2,3,0,1]', 'row_half_mirror'):
        a.op(f'v_add_f32_dpp v{M}, v{M}, v{M} {dpp} row_mask:0xf bank_mask:0xf')
    a.op(f'v_rcp_f32 v{M}, v{M}')
    for i in range(5):
        a.op(f'v_mul_f32 v{G + i}, v{G + i}, v{M}')
    a.op(f'v_cvt_pk_bf16_f32 v{G}, v{G}, v{G + 1}')
    a.op(f'v_cvt_pk_bf16_f32 v{G + 1}, v{G + 2}, v{G + 3}')
    a.op(f'buffer_store_dwordx2 {vr(G, 2)}, v117, {SRD_W}, {S_STEP} offen{sc}')
    a.op(f'v_mov_b32_dpp v{T1}, v{G + 4} quad_perm:[1,0,3,2] row_mask:0xf bank_mask:0xf')
    a.op(f'v_cndmask_b32 v{T2}, v{G + 4}, v{T1}, {S_ODD}')
    a.op(f'v_cndmask_b32 v{T1}, v{T1}, v{G + 4}, {S_ODD}')
    a.op(f'v_cvt_pk_bf16_f32 v{T1}, v{T2}, v{T1}')
    a.op(f'buffer_store_dword v{T1}, v118, {SRD_W}, {S_STEP} offen{sc}')
    stamp(a, 3, TA)
    ufinish(False)
    a.label(skip)
    a.nop(2)
    a.op(f's_add_u32 {S_XOFF}, {S_XOFF}, 28672')
    xb_prefetch()
    a.op(f'v_lshlrev_b32 v{TACC + 10}, 2, v2')
    a.op(f's_add_u32 {S_T0}, {S_AR}, {S_C}')
    a.op('s_mov_b64 exec, 0xfffffff')
    a.op(f'buffer_load_dword v13, v{TACC + 10}, {SRD_W}, {S_T0} offen')
    a.op(f's_add_u32 {S_T0}, {S_XOFF}, s59')
    a.op('s_mov_b64 exec, 0x7f')
    a.op(f'buffer_load_dword v13, v{TACC + 10}, {SRD_W}, {S_T0} offen')
    a.op('s_mov_b64 exec, -1')
    NL = 7 - NSE
    for i in range(NL):
        if i % 4 == 0:
            a.op(f's_add_u32 {S_T1}, s66, {i * 1024}')
        a.op(f'buffer_load_dwordx4 {vr(AF + 4 * i, 4)}, v2, {SRD_W}, {S_T1} offen offset:{(i % 4) * 1024}')
    a.op(f's_add_u32 s66, s66, {28 * 16384}')
    if STAMP and not LIGHT:
        a.op('s_waitcnt vmcnt(0)')
        stamp(a, 5, TA)
    a.op(f's_add_u32 {S_S}, {S_S}, 1')
    ring(a)
    a.op(f's_cmp_lt_u32 {S_S}, {NSTEP}')
    a.op(f's_cbranch_scc1 {loop}')
    a.op('s_waitcnt vmcnt(0)')


def secondary(a, sc, tag):
    AF, UACC, TACC, UBR, TA, SB, XV, PB2 = 16, 44, 64, 72, 88, 92, 112, 144
    SACC = PB2 + 16
    XB, MN = SB, SB + 8
    WB = 176
    S_C1 = S_STEPN
    a.raw(f"""
    s_movk_i32 {S_T3}, 896
    v_and_b32 v12, 1, v3
    v_lshlrev_b32 v12, 2, v12
    v_lshrrev_b32 v13, 1, v3
    v_lshl_add_u32 v12, v13, 1, v12
    s_lshl_b32 {S_T0}, {S_WAVE}, 3
    v_add_u32 v12, {S_T0}, v12
    v_mul_u32_u24 v12, 80, v12
    v_lshl_add_u32 v12, v4, 2, v12
    v_add_u32 v12, {LDS_RR}, v12
    s_mul_i32 {S_T0}, {S_WAVE}, 14336
    s_add_u32 {S_T0}, {S_T0}, {LDS_WL}
    v_add_u32 v13, {S_T0}, v2
    v_lshlrev_b32 v14, 5, v0
    s_cmp_lt_u32 {S_H}, 12
    s_cselect_b32 {S_C1}, 1, 0
    """)
    a.raw(f"""
    v_and_b32 v6, 1, v3
    v_lshlrev_b32 v6, 3, v6
    v_lshrrev_b32 v7, 1, v3
    v_lshl_add_u32 v6, v7, 2, v6
    v_lshl_add_u32 v6, v4, 4, v6
    s_mul_i32 {S_T0}, {S_H}, 7168
    s_mul_i32 {S_T1}, {S_WAVE}, 1280
    s_add_u32 {S_T0}, {S_T0}, {S_T1}
    s_add_u32 {S_T0}, {S_T0}, {AR_U}
    v_add_u32 v6, {S_T0}, v6
    """)
    a.raw(f"""
    s_and_b32 {S_T2}, {S_WAVE}, 1
    s_movk_i32 {S_T0}, 7168
    v_mul_lo_u32 v7, v3, {S_T0}
    v_lshl_add_u32 v7, v4, 4, v7
    s_mul_i32 {S_T0}, {S_WAVE}, 28672
    s_lshl_b32 {S_T1}, {S_H}, 8
    s_add_u32 {S_T0}, {S_T0}, {S_T1}
    s_add_u32 {S_T0}, {S_T0}, {AR_U}
    v_add_u32 v7, {S_T0}, v7
    """)
    a.raw(f"""
    s_lshl_b32 {S_C}, {S_T2}, 4
    s_add_u32 {S_C}, {S_C}, {S_H}
    v_and_b32 v108, 7, v0
    v_lshrrev_b32 v110, 3, v0
    v_mul_u32_u24 v109, 80, v108
    v_lshl_add_u32 v109, v110, 3, v109
    s_mul_i32 {S_T0}, {S_T2}, 2560
    s_add_u32 {S_T0}, {S_T0}, {LDS_RR}
    v_add_u32 v109, {S_T0}, v109
    v_lshrrev_b32 v111, 2, v110
    v_lshlrev_b32 v15, 9, v111
    v_and_b32 v111, 1, v110
    v_lshl_add_u32 v15, v111, 7, v15
    v_lshl_add_u32 v15, v108, 4, v15
    v_bfe_u32 v111, v110, 1, 1
    v_lshl_add_u32 v15, v111, 2, v15
    s_lshr_b32 {S_T0}, {S_C}, 2
    s_lshl_b32 {S_T0}, {S_T0}, 10
    s_and_b32 {S_T1}, {S_C}, 2
    s_lshl_b32 {S_T1}, {S_T1}, 7
    s_add_u32 {S_T0}, {S_T0}, {S_T1}
    s_and_b32 {S_T1}, {S_C}, 1
    s_lshl_b32 {S_T1}, {S_T1}, 3
    s_add_u32 {S_T0}, {S_T0}, {S_T1}
    v_add_u32 v15, {S_T0}, v15
    v_mul_lo_u32 v111, v108, {S_T3}
    v_lshl_add_u32 v111, v110, 2, v111
    s_lshl_b32 {S_T0}, {S_C}, 5
    v_add_u32 v111, {S_T0}, v111
    """)
    ON = 111
    a.raw(f"""
    s_lshl_b32 {S_T0}, {S_WAVE}, 9
    s_add_u32 {S_T0}, {S_T0}, {PM}
    v_add_u32 v110, {S_T0}, v2
    v_mov_b32 v108, 0x7ff00000
    v_cmp_lt_u32 vcc, 31, v0
    v_cndmask_b32 v110, v110, v108, vcc
    s_lshl_b32 {S_T0}, {S_WAVE}, 11
    s_add_u32 {S_T0}, {S_T0}, {PX}
    v_add_u32 v11, {S_T0}, v2
    """)
    for tl in range(7):
        a.raw(f"""
        s_mul_i32 {S_T0}, {S_H}, 896
        s_mul_i32 {S_T1}, {S_WAVE}, {32 if tl < 2 else 80}
        s_add_u32 {S_T0}, {S_T0}, {S_T1}
        s_add_u32 {S_T0}, {S_T0}, {320 + tl * 16 if tl < 2 else 448 + (tl - 2) * 16}
        """)
        if tl < 6:
            load_tile(a, S_T0, lambda t, hf, tl=tl: wreg(tl * 7 + t, WB)[1](hf * 4), 108)
        else:
            load_tile(a, S_T0, lambda t, hf: vr(XV + t * 8 + hf * 4, 4), 108)
            a.op('s_waitcnt vmcnt(0)')
            for t in range(7):
                for hf in range(2):
                    a.op(f'ds_write_b128 v13, {vr(XV + t * 8 + hf * 4, 4)} offset:{t * 2048 + hf * 1024}')
            a.op('s_waitcnt lgkmcnt(0)')
    if MERGED:
        lk = f'L_sec_lk_{tag}'
        a.op(f's_cmp_lg_u32 {S_WAVE}, 3')
        a.op(f's_cbranch_scc1 {lk}')
        a.raw(f"""
        v_min_u32 v108, 27, v0
        s_mul_i32 {S_T0}, {S_H}, 28
        v_add_u32 v108, {S_T0}, v108
        v_lshlrev_b32 v111, 4, v108
        s_mov_b32 {S_T0}, 0x04924925
        v_mul_hi_u32 v107, v108, {S_T0}
        v_mul_u32_u24 v106, 56, v107
        v_sub_u32 v108, v108, v106
        v_lshrrev_b32 v109, 3, v108
        v_lshlrev_b32 v109, 10, v109
        v_bfe_u32 v106, v108, 2, 1
        v_lshl_add_u32 v109, v106, 8, v109
        v_and_b32 v106, 1, v108
        v_lshl_add_u32 v109, v106, 9, v109
        v_bfe_u32 v106, v108, 1, 1
        v_lshl_add_u32 v109, v106, 3, v109
        v_lshl_add_u32 v109, v107, 4, v109
        v_add_u32 v109, {LDS_MEM}, v109
        """)
        a.label(lk)
    a.raw(f"""
    s_lshl_b32 {S_T0}, {S_WAVE}, 10
    s_add_u32 {S_T0}, {S_T0}, 8192
    v_lshlrev_b32 v172, 5, v4
    v_lshl_add_u32 v172, v3, 3, v172
    v_add_u32 v172, {S_T0}, v172
    v_lshlrev_b32 v173, 8, v3
    v_lshl_add_u32 v173, v4, 3, v173
    v_add_u32 v173, {S_T0}, v173
    s_lshl_b32 {S_T0}, {S_WAVE}, 2
    s_add_u32 {S_T0}, {S_T0}, 40
    v_add_u32 v108, {S_T0}, v3
    v_lshrrev_b32 v174, 3, v108
    v_lshlrev_b32 v174, 10, v174
    v_bfe_u32 v107, v108, 2, 1
    v_lshl_add_u32 v174, v107, 8, v174
    v_and_b32 v107, 1, v108
    v_lshl_add_u32 v174, v107, 9, v174
    v_bfe_u32 v107, v108, 1, 1
    v_lshl_add_u32 v174, v107, 3, v174
    v_and_b32 v107, 7, v4
    v_lshl_add_u32 v174, v107, 4, v174
    v_add_u32 v174, {LDS_MEM}, v174
    v_lshlrev_b32 v175, 3, v0
    s_lshl_b32 s67, {S_H}, 2
    s_add_u32 s67, s67, {S_WAVE}
    s_mul_i32 s67, s67, 1536
    s_add_u32 s67, s67, {SP}
    s_mul_i32 s59, {S_WAVE}, 7168
    s_add_u32 s59, s59, {XF_OFF + 5120}
    """)
    quarter_setup(a)
    a.raw(f"""
    v_mov_b32 v8, {0 if DRY else -1}
    v_and_b32 v9, 3, v0
    s_lshl_b32 {S_T0}, {S_WAVE}, 4
    s_lshl_b32 {S_T1}, {S_H}, 8
    s_add_u32 {S_T0}, {S_T0}, {S_T1}
    s_add_u32 {S_T0}, {S_T0}, {FLR_P}
    v_lshl_add_u32 v9, v9, 2, {S_T0}
    v_lshlrev_b32 v10, 8, v0
    v_min_u32 v0, 27, v0
    v_lshlrev_b32 v0, 2, v0
    s_add_u32 {S_T1}, {S_T1}, {FLR_M}
    v_add_u32 v0, {S_T1}, v0
    s_lshl_b32 s58, {S_C}, 2
    s_add_u32 s58, s58, {FLR_M}
    s_mov_b32 {S_S}, 0
    s_lshl_b32 {S_XV}, {S_H}, 14
    s_lshl_b32 {S_T0}, {S_WAVE}, 12
    s_add_u32 {S_XV}, {S_XV}, {S_T0}
    s_add_u32 {S_XV}, {S_XV}, {XVOP_OFF}
    """)
    for k in range(16):
        a.op(f'v_mov_b32 v{UBR + k}, 0')
    for k in range(32):
        a.op(f'v_mov_b32 v{XV + k}, 0')
    ring(a)
    def xv_loads():
        for p in range(2):
            for hf in range(2):
                a.op(f'buffer_load_dwordx4 {vr(XV + p * 8 + hf * 4, 4)}, v14, {SRD_W}, {S_XV} offen offset:{p * 2048 + hf * 16}')
        nx = a.newlabel('L_sec_noxv')
        a.op(f's_cmp_eq_u32 {S_C1}, 0')
        a.op(f's_cbranch_scc1 {nx}')
        a.op(f's_add_u32 {S_T0}, {S_XV}, {16 * 16384}')
        for p in range(2):
            for hf in range(2):
                a.op(f'buffer_load_dwordx4 {vr(XV + 16 + p * 8 + hf * 4, 4)}, v14, {SRD_W}, {S_T0} offen offset:{p * 2048 + hf * 16}')
        a.label(nx)

    a.op(f's_mul_i32 s66, {S_H}, 28672')
    a.op(f's_mul_i32 {S_T1}, {S_WAVE}, {NSE * 1024}')
    a.op(f's_add_u32 s66, s66, {S_T1}')
    a.op(f's_add_u32 s66, s66, {XVOP_OFF + 2 * 28 * 16384}')
    wait_x0(a, AF, 's' + tag)
    xv_loads()
    loop = f'L_sec_loop_{tag}'
    a.label(loop)
    a.nop(8)
    for k in range(7):
        zero4(a, UACC + 4 * k)
    qa = stage_a(a, AF, PB2, PB2 + 8, 108, 'sm' + tag, 0, SECFLAG)
    stamp(a, 0, 105)

    def smft(tl, t):
        a.op(f'v_smfmac_f32_16x16x64_bf16 {vr(TACC + 4 * tl, 4)}, {vr(AF + 4 * t, 4)}, {wreg(tl * 7 + t, WB)[0]}, v1')

    def smf(u, t):
        a.op(f'v_smfmac_f32_16x16x64_bf16 {vr(UACC + 4 * u, 4)}, {vr(AF + 4 * t, 4)}, {wreg((2 + u) * 7 + t, WB)[0]}, v1')

    def sread(t):
        b = SB + 8 * (t % 2)
        a.op(f'ds_read_b128 {vr(b, 4)}, v13 offset:{t * 2048}')
        return a.op(f'ds_read_b128 {vr(b + 4, 4)}, v13 offset:{t * 2048 + 1024}')

    def upost(u):
        d = UACC + 4 * u
        presum(a, d)
        a.op(f'v_cvt_pk_bf16_f32 v{d}, v{d}, v{d + 1}')
        a.op(f'buffer_store_dword v{d}, v6, {SRD_W}, {S_AR} offen offset:{u * 256}{sc}')

    for kt in range(2):
        a.op(f'buffer_load_dwordx4 {vr(XB + 4 * kt, 4)}, v2, {SRD_W}, s59 offen offset:{kt * 1024}')
    a.op(f'ds_read2_b32 {vr(MN, 2)}, v174 offset0:0 offset1:32')
    a.op(f'ds_read2_b32 {vr(MN + 2, 2)}, v174 offset0:1 offset1:33')
    for t in range(7):
        a.wait_lg(qa[t])
        smft(0, t)
        smft(1, t)
    smf(0, 0)
    smf(0, 1)
    for tl in range(2):
        d = TACC + 4 * tl
        a.op(f'v_cvt_pk_bf16_f32 v{d}, v{d}, v{d + 1}')
        a.op(f'v_cvt_pk_bf16_f32 v{d + 1}, v{d + 2}, v{d + 3}')
        a.op(f'ds_write_b64 v172, {vr(d, 2)} offset:{tl * 512}')
    a.op(f'ds_read_b64_tr_b16 {vr(TA, 2)}, v173')
    q = a.op(f'ds_read_b64_tr_b16 {vr(TA + 2, 2)}, v173 offset:128')
    for t in range(2, 6):
        smf(0, t)
    a.op('s_waitcnt vmcnt(0)')
    a.wait_lg(q)
    for kt in range(3):
        B = vr(XB + 4 * kt, 4) if kt < 2 else vr(MN, 4)
        a.op(f'v_mfma_f32_16x16x32_bf16 {vr(SACC + 4 * kt, 4)}, {vr(TA, 4)}, {B}, 0')
    smf(0, 6)
    smf(1, 0)
    for kt in range(3):
        presum(a, SACC + 4 * kt)
    a.op(f'v_mov_b32 v{SACC + 2}, v{SACC + 4}')
    a.op(f'v_mov_b32 v{SACC + 3}, v{SACC + 5}')
    a.op(f's_add_u32 {S_T0}, {S_STEP}, s67')
    a.op(f'buffer_store_dwordx4 {vr(SACC, 4)}, v2, {SRD_W}, {S_T0} offen{sc}')
    a.op(f'buffer_store_dwordx2 {vr(SACC + 8, 2)}, v175, {SRD_W}, {S_T0} offen offset:1024{sc}')
    stamp(a, 1, 105)
    for i in range(NSE):
        if i % 4 == 0:
            a.op(f's_add_u32 {S_T1}, s66, {i * 1024}')
        a.op(f'buffer_load_dwordx4 {vr(PB2, 4)}, v2, {SRD_W}, {S_T1} offen offset:{(i % 4) * 1024}')
    a.op(f's_add_u32 s66, s66, {28 * 16384}')
    if MERGED:
        lm = a.newlabel('L_sec_mp')
        sv = a.lg_seq
        a.op(f's_cmp_lg_u32 {S_WAVE}, 3')
        a.op(f's_cbranch_scc1 {lm}')
        a.op(f'ds_read2_b32 {vr(TACC, 2)}, v109 offset0:0 offset1:32')
        a.op(f'ds_read2_b32 {vr(TACC + 2, 2)}, v109 offset0:1 offset1:33')
        a.op('s_waitcnt lgkmcnt(0)')
        a.op(f'buffer_store_dwordx4 {vr(TACC, 4)}, v111, {SRD_W}, {S_AR} offen sc1')
        a.label(lm)
        a.lg_seq = sv
    for t in range(1, 7):
        smf(1, t)
    upost(0)
    qs = [sread(0), sread(1)]
    for t in range(7):
        smf(2, t)
        smf(3, t)
        a.wait_lg(qs[t])
        a.op(f'v_smfmac_f32_16x16x64_bf16 {vr(UACC + 16, 4)}, {vr(AF + 4 * t, 4)}, {vr(SB + 8 * (t % 2), 8)}, v1')
        if t + 2 < 7:
            qs.append(sread(t + 2))
        if t == 3:
            upost(1)
    for u in range(2, 5):
        upost(u)
    stamp(a, 2, 105)
    lx = a.newlabel('L_xvl')
    a.op(f's_cmp_gt_u32 {S_WAVE}, 1')
    a.op(f's_cbranch_scc1 {lx}')
    xv_loads()
    a.label(lx)
    for k in range(4):
        a.op(f'v_mov_b32 v{TA + k}, {0 if DRY else -1}')
    a.op(f's_add_u32 {S_T0}, {S_PREV}, s67')
    a.op(f'buffer_store_dwordx4 {vr(TA, 4)}, v2, {SRD_W}, {S_T0} offen{sc}')
    a.op(f'buffer_store_dwordx2 {vr(TA, 2)}, v175, {SRD_W}, {S_T0} offen offset:1024{sc}')
    nra = f'L_sec_nora_{tag}'
    a.op(f's_cmp_gt_u32 {S_WAVE}, {S_C1}')
    a.op(f's_cbranch_scc1 {nra}')
    a.op(f'buffer_store_dword v8, v15, {SRD_W}, {S_PREV} offen{sc}')
    a.label(nra)
    PXR, ACC = 16, 32
    a.op(f's_lshl_b32 {S_T1}, {S_C1}, 12')
    a.op(f's_add_u32 {S_T1}, {S_T1}, {S_AR}')
    loads = [f'buffer_load_dwordx4 {vr(UBR, 4)}, v7, {SRD_W}, {S_AR} offen sc1',
             f'buffer_load_dwordx4 {vr(UBR + 8, 4)}, v7, {SRD_W}, {S_T1} offen sc1']
    zero4(a, ACC)
    zero4(a, ACC + 4)
    a.op(f's_add_u32 {S_T3}, {S_S}, 1')
    a.op(f'v_mov_b32 v107, {S_T3}')
    loads.append(f'buffer_load_dword v106, v9, {SRD_W}, 0 offen sc1')
    poll(a, loads, list(range(UBR, UBR + 4)) + list(range(UBR + 8, UBR + 12)), 108, 'ub' + tag)
    lfo = a.newlabel('L_fo')
    a.op(f'v_cmp_gt_u32 vcc, {0 if DRY else S_T3}, v106')
    a.op(f's_cbranch_vccz {lfo}')
    stamp(a, 3, 104)
    flagwait(a, 9, 108, S_T3, 'pf' + tag)
    a.label(lfo)

    def mkp(b):
        return [f'buffer_load_dwordx4 {vr(b + 4 * p, 4)}, v11, {SRD_W}, {S_STEP} offen offset:{p * 1024} sc1' for p in range(2)] + \
               [f'buffer_load_dwordx4 {vr(b + 8, 4)}, v110, {SRD_W}, {S_STEP} offen sc1']

    def usep(b):
        npf = a.newlabel('L_sec_nopf')
        a.op(f's_cmp_gt_u32 {S_WAVE}, {S_C1}')
        a.op(f's_cbranch_scc1 {npf}')
        a.op('s_mov_b64 exec, 0xffff')
        a.op(f'buffer_store_dword v107, v10, {SRD_W}, s58 offen{sc}')
        a.op('s_mov_b64 exec, -1')
        a.label(npf)
        stamp(a, 4, 104)
        for tl in range(2):
            for p in range(2):
                a.op(f'v_smfmac_f32_16x16x64_bf16 {vr(ACC + 4 * tl, 4)}, {vr(b + 4 * p, 4)}, {vr(XV + 16 * tl + 8 * p, 8)}, v1')
            a.op(f'v_smfmac_f32_16x16x64_bf16 {vr(ACC + 4 * tl, 4)}, {vr(b + 8, 4)}, {vr(UBR + 8 * tl, 8)}, v1')
    ppoll(a, mkp, (PXR, PB2 + 16), 12, 108, usep, 'px' + tag)
    a.nop(8)
    for tl in range(2):
        presum(a, ACC + 4 * tl)
        a.op(f'ds_write_b32 v12, v{ACC + 4 * tl} offset:{tl * 2560}')
        a.op(f'ds_write_b32 v12, v{ACC + 4 * tl + 1} offset:{tl * 2560 + 80}')
    a.op('s_waitcnt lgkmcnt(0)')
    a.op('s_barrier')
    ljoin = f'L_sec_join_{tag}'
    a.op(f's_cmp_gt_u32 {S_WAVE}, {S_C1}')
    a.op(f's_cbranch_scc1 {ljoin}')
    R = 92
    for w in range(4):
        a.op(f'ds_read_b64 {vr(R + 2 * w, 2)}, v109 offset:{w * 640}')
    a.op('s_waitcnt lgkmcnt(0)')
    a.op(f'v_pk_add_f32 {vr(R, 2)}, {vr(R, 2)}, {vr(R + 2, 2)}')
    a.op(f'v_pk_add_f32 {vr(R + 4, 2)}, {vr(R + 4, 2)}, {vr(R + 6, 2)}')
    a.op(f'v_pk_add_f32 {vr(R, 2)}, {vr(R, 2)}, {vr(R + 4, 2)}')
    a.op(f'v_cvt_pk_bf16_f32 v{R}, v{R}, v{R + 1}')
    a.op(f'buffer_store_dword v{R}, v15, {SRD_W}, {S_NEXT} offen{sc}')
    if not MERGED:
        a.op(f's_add_u32 {S_T0}, {S_AR}, {ARSTEP + AR_MEMN}')
        a.op(f'buffer_store_dword v{R}, v{ON}, {SRD_W}, {S_T0} offen')
    stamp(a, 5, 105)
    a.label(ljoin)
    a.nop(2)
    a.op(f's_add_u32 {S_XV}, {S_XV}, {28 * 16384}')
    lx = a.newlabel('L_xvl')
    a.op(f's_cmp_lt_u32 {S_WAVE}, 2')
    a.op(f's_cbranch_scc1 {lx}')
    xv_loads()
    a.label(lx)
    a.op('s_add_u32 s59, s59, 28672')
    a.op(f's_add_u32 {S_S}, {S_S}, 1')
    ring(a)
    a.op(f's_cmp_lt_u32 {S_S}, {NSTEP}')
    a.op(f's_cbranch_scc1 {loop}')
    a.op('s_waitcnt vmcnt(0)')


def chain_body(a, endlabel):
    a.op(f's_lshr_b32 {S_H}, {S_CW}, 1')
    common_addr(a)
    a.op(f's_and_b32 {S_T0}, {S_CW}, 1')
    a.op(f's_lshl_b32 {S_T1}, {S_MODE}, 1')
    a.op(f's_or_b32 {S_T0}, {S_T0}, {S_T1}')
    a.op(f's_cmp_eq_u32 {S_T0}, 1')
    a.op('s_cbranch_scc1 L_sec_fast')
    a.op(f's_cmp_eq_u32 {S_T0}, 2')
    a.op('s_cbranch_scc1 L_prim_safe')
    a.op(f's_cmp_eq_u32 {S_T0}, 3')
    a.op('s_cbranch_scc1 L_sec_safe')
    primary(a, '', 'f')
    a.op(f's_branch {endlabel}')
    a.label('L_sec_fast')
    secondary(a, '', 'f')
    a.op(f's_branch {endlabel}')
    a.label('L_prim_safe')
    primary(a, ' sc1', 's')
    a.op(f's_branch {endlabel}')
    a.label('L_sec_safe')
    secondary(a, ' sc1', 's')
    a.op(f's_branch {endlabel}')


def chain_kernel(name, force_safe=False):
    a = Asm()
    if NOCOLD:
        _op = a.op
        state = {'inloop': False}
        def op2(text):
            if state['inloop'] and text.startswith('buffer_load') and 'sc1' not in text:
                return _op('s_nop 0')
            return _op(text)
        _lab = a.label
        def lab2(n):
            if '_loop_' in n:
                state['inloop'] = True
            if n in ('L_sec_fast', 'L_prim_safe', 'L_sec_safe'):
                state['inloop'] = False
            _lab(n)
        a.op = op2
        a.label = lab2
    a.label(name)
    a.raw(f"""
    s_cmp_ge_u32 s2, 256
    s_cbranch_scc1 L_chain_end
    s_load_dwordx2 s[4:5], s[0:1], 0
    s_load_dwordx2 s[6:7], s[0:1], 96
    s_load_dwordx2 s[8:9], s[0:1], 104
    v_lshrrev_b32 v3, 6, v0
    v_and_b32 v0, 63, v0
    v_readfirstlane_b32 {S_WAVE}, v3
    s_waitcnt lgkmcnt(0)
    s_mov_b32 s12, s4
    s_mov_b32 s13, s5
    s_mov_b32 s14, 1835008
    s_mov_b32 s15, 0x00020000
    s_mov_b32 s16, s8
    s_mov_b32 s17, s9
    s_mov_b32 s18, {WS_BYTES}
    s_mov_b32 s19, 0x00020000
    s_mov_b32 s24, s6
    s_mov_b32 s25, s7
    s_mov_b32 s26, 256
    s_mov_b32 s27, 0x00020000
    """)
    role_assign(a, 256)
    if force_safe:
        a.op(f's_mov_b32 {S_MODE}, 1')
    a.op(f's_cmp_eq_u32 {S_CW}, -1')
    a.op('s_cbranch_scc1 L_worker' if MERGED else 's_cbranch_scc1 L_chain_end')
    chain_body(a, 'L_chain_end')
    if MERGED:
        import work
        a.label('L_worker')
        a.raw(f"""
        s_cmp_lg_u32 {S_WAVE}, 0
        s_cbranch_scc1 L_wt_wait
        s_mov_b64 exec, 1
        v_mov_b32 v4, 1
        v_mov_b32 v5, 40
        buffer_atomic_add v4, v5, {SRD_D}, 0 offen sc0 sc1
        s_waitcnt vmcnt(0)
        v_mov_b32 v8, {LDS_ROLE}
        ds_write_b32 v8, v4
        s_waitcnt lgkmcnt(0)
        s_mov_b64 exec, -1
        """)
        a.label('L_wt_wait')
        a.raw(f"""
        s_barrier
        v_mov_b32 v8, {LDS_ROLE}
        ds_read_b32 v4, v8
        s_waitcnt lgkmcnt(0)
        v_readfirstlane_b32 s21, v4
        v_mov_b32 v1, v0
        s_barrier
        """)
        work.worker_body(a, 's21', 'L_chain_end')
    a.label('L_chain_end')
    a.op('s_endpgm')
    return a.text()


KD = """
.section .rodata,"a"
.p2align 6
.amdhsa_kernel {name}
  .amdhsa_next_free_vgpr {vgpr}
  .amdhsa_next_free_sgpr 102
  .amdhsa_accum_offset {acc}
  .amdhsa_group_segment_fixed_size 0
  .amdhsa_kernarg_size 112
  .amdhsa_user_sgpr_count 2
  .amdhsa_user_sgpr_kernarg_segment_ptr 1
  .amdhsa_system_sgpr_workgroup_id_x 1
.end_amdhsa_kernel
.text
"""

if __name__ == '__main__':
    import sys
    safe = 'safe' in sys.argv[2:]
    STAMP = 'stamp' in sys.argv[2:]
    LIGHT = 'light' in sys.argv[2:]
    DRY = 'dry' in sys.argv[2:]
    NOCOLD = 'nocold' in sys.argv[2:]
    name = 'chain_kernel'
    out = f'; @launch kernel={name} grid=(256,1,1) block=(256,1,1) lds={LDS_BYTES}\n'
    out += '.amdgcn_target "amdgcn-amd-amdhsa--gfx950"\n.text\n'
    out += f'.globl {name}\n.p2align 8\n.type {name},@function\n'
    out += chain_kernel(name, safe)
    out += KD.format(name=name, vgpr=512, acc=256)
    open(sys.argv[1], 'w').write(out)
```

```python
WS_BYTES = 268435456
WT_OFF = 0
XVOP_OFF = 16 << 20
TX_OFF = 48 << 20
HB_OFF = 96 << 20
STEP = 131072
MEMF = 0
MEMN = 8192
PX = 16384
PM = 24576
SP = 32768
UB = 163840
HB_USED = UB + 28 * 4096
NSTEP = 64
AR_OFF = 100 << 20
ARSTEP = 122880
AR_MEMN = 0
AR_U = 8192
NRING = 4
FLG_M = HB_OFF + 4 * STEP
FLG_P = FLG_M + 256
WBT_OFF = 13 << 20
WOT_OFF = 15 << 20
KVP_OFF = 92 << 20
KVF_OFF = 95 << 20
CNT_X = FLG_M + 8192
CNT_B1 = FLG_M + 2048
CNT_R = FLG_M + 2176
CNT_C = FLG_M + 24576
CNT_F = FLG_M + 2688
UA2_OFF = 112 << 20
CNT_T = FLG_M + 16384
CNT_XALL = FLG_M + 2816
FLR_M = FLG_M + 32768
FLR_P = FLG_M + 36864
XF_OFF = 80 << 20
```

```python
from asmdsl import Asm, vr, ar, sr
from layout import *
from work import XROW, XBUF, SRD_X, SRD_W, SRD_O

LOG2E = 0x3FB8AA3B
DPP16 = ('quad_perm:[1,0,3,2]', 'quad_perm:[2,3,0,1]', 'row_half_mirror', 'row_mirror')


def b1_task(a, s_task, tag, sc=''):
    a.raw(f"""
    s_and_b32 s30, {s_task}, 3
    s_lshl_b32 s30, s30, 2
    s_add_u32 s30, s30, s20
    s_lshr_b32 s31, {s_task}, 2
    s_lshl_b32 s36, s30, 5
    v_add_u32 v5, s36, v4
    s_movk_i32 s37, 896
    v_mul_lo_u32 v5, v5, s37
    v_lshl_add_u32 v5, v3, 4, v5
    """)
    for nt in range(4):
        a.op(f's_mov_b32 s37, {WBT_OFF + (512 * (1 + (nt >> 1)) + 16 * (nt & 1)) * 896}')
        for ks in range(14):
            a.op(f'buffer_load_dwordx4 {ar((nt * 14 + ks) * 4, 4)}, v5, {SRD_W}, s37 offen offset:{ks * 64}')
    for i in range(7):
        a.raw(f"""
        v_add_u32 v6, {256 * i}, v0
        s_mov_b32 s37, 0x04924925
        v_mul_hi_u32 v7, v6, s37
        v_mul_u32_u24 v{8 + i}, 56, v7
        v_sub_u32 v6, v6, v{8 + i}
        v_mul_u32_u24 v{8 + i}, {XROW}, v7
        v_lshl_add_u32 v{8 + i}, v6, 4, v{8 + i}
        """)
    a.raw(f"""
    v_lshlrev_b32 v15, 4, v0
    v_mul_u32_u24 v6, {XROW}, v4
    v_lshl_add_u32 v6, v3, 4, v6
    s_mul_i32 s39, s31, {4 * 28672}
    s_mov_b32 s40, 0
    s_mov_b32 s41, 0
    s_mov_b32 s43, {LOG2E}
    v_cmp_lt_u32 s[44:45], 11, v4
    v_cmp_eq_u32 s[46:47], 12, v4
    v_mov_b32 v2, 0xff800000
    v_mov_b32 v7, 0x7f800000
    """)
    ST, AFR, ACC, KV, PH, VB, TM = 16, 44, 60, 92, 124, 140, 148
    for k in range(32):
        a.op(f'v_mov_b32 v{KV + k}, 0')

    def gload():
        for i in range(7):
            a.op(f's_add_u32 s37, s39, {i * 4096}')
            a.op(f'buffer_load_dwordx4 {vr(ST + 4 * i, 4)}, v15, {SRD_X}, s37 offen')
        a.op('s_add_u32 s39, s39, 28672')

    def lwrite():
        for i in range(7):
            a.op(f'v_add_u32 v5, s41, v{8 + i}')
            a.op(f'ds_write_b128 v5, {vr(ST + 4 * i, 4)}')

    gload()
    a.op('s_waitcnt vmcnt(0)')
    lwrite()
    a.op('s_waitcnt lgkmcnt(0)')
    a.op('s_barrier')
    loop = f'L_b1_loop_{tag}'
    a.label(loop)
    gload()
    a.op('v_add_u32 v5, s41, v6')
    q = {}

    def rd(ks):
        b = AFR + 8 * (ks % 2)
        a.op(f'ds_read_b128 {vr(b, 4)}, v5 offset:{ks * 64}')
        q[ks] = a.op(f'ds_read_b128 {vr(b + 4, 4)}, v5 offset:{ks * 64 + 16 * XROW}')
    rd(0)
    for ks in range(14):
        if ks + 1 < 14:
            rd(ks + 1)
        a.wait_lg(q[ks])
        b = AFR + 8 * (ks % 2)
        for mt in range(2):
            for nt in range(4):
                d = vr(ACC + (mt * 4 + nt) * 4, 4)
                a.op(f'v_mfma_f32_16x16x32_bf16 {d}, {vr(b + 4 * mt, 4)}, {ar((nt * 14 + ks) * 4, 4)}, {"0" if ks == 0 else d}')
    for mt in range(2):
        for r in range(4):
            x0, x1 = ACC + (mt * 4 + 0) * 4 + r, ACC + (mt * 4 + 1) * 4 + r
            o = TM + (mt * 4 + r) * 4
            MX, MNn, S1, S2 = TM + 32, TM + 33, TM + 34, TM + 35
            a.op(f'v_cndmask_b32 v{MX}, v{x1}, v2, s[44:45]')
            a.op(f'v_cndmask_b32 v{MNn}, v{x1}, v7, s[44:45]')
            a.op(f'v_max_f32 v{MX}, v{MX}, v{x0}')
            a.op(f'v_min_f32 v{MNn}, v{MNn}, v{x0}')
            for d in DPP16:
                a.op(f'v_max_f32_dpp v{MX}, v{MX}, v{MX} {d} row_mask:0xf bank_mask:0xf')
                a.op(f'v_min_f32_dpp v{MNn}, v{MNn}, v{MNn} {d} row_mask:0xf bank_mask:0xf')
            a.op(f'v_sub_f32 v{o}, v{x0}, v{MX}')
            a.op(f'v_sub_f32 v{o + 1}, v{x1}, v{MX}')
            a.op(f'v_sub_f32 v{o + 2}, v{MNn}, v{x0}')
            a.op(f'v_sub_f32 v{o + 3}, v{MNn}, v{x1}')
            for k in range(4):
                a.op(f'v_mul_f32 v{o + k}, s43, v{o + k}')
            for k in range(4):
                a.op(f'v_exp_f32 v{o + k}, v{o + k}')
            a.op(f'v_cndmask_b32 v{o + 1}, v{o + 1}, 0, s[44:45]')
            a.op(f'v_cndmask_b32 v{o + 3}, v{o + 3}, 0, s[44:45]')
            a.op(f'v_add_f32 v{S1}, v{o}, v{o + 1}')
            a.op(f'v_add_f32 v{S2}, v{o + 2}, v{o + 3}')
            for d in DPP16:
                a.op(f'v_add_f32_dpp v{S1}, v{S1}, v{S1} {d} row_mask:0xf bank_mask:0xf')
                a.op(f'v_add_f32_dpp v{S2}, v{S2}, v{S2} {d} row_mask:0xf bank_mask:0xf')
            a.op(f'v_rcp_f32 v{S1}, v{S1}')
            a.op(f'v_rcp_f32 v{S2}, v{S2}')
            a.op(f'v_mul_f32 v{o}, v{o}, v{S1}')
            a.op(f'v_mul_f32 v{o + 1}, v{o + 1}, v{S1}')
            a.op(f'v_mul_f32 v{o + 2}, v{o + 2}, v{S2}')
            a.op(f'v_mul_f32 v{o + 3}, v{o + 3}, v{S2}')
            v1_ = ACC + (mt * 4 + 3) * 4 + r
            a.op(f'v_cndmask_b32 v{v1_}, v{v1_}, 1.0, s[46:47]')
    for ft in range(4):
        for mt in range(2):
            for hh in range(2):
                s0 = TM + (mt * 4 + 2 * hh) * 4 + ft
                a.op(f'v_cvt_pk_bf16_f32 v{PH + 4 * ft + 2 * mt + hh}, v{s0}, v{s0 + 4}')
    for dt in range(2):
        for mt in range(2):
            for hh in range(2):
                s0 = ACC + (mt * 4 + 2 + dt) * 4 + 2 * hh
                a.op(f'v_cvt_pk_bf16_f32 v{VB + 4 * dt + 2 * mt + hh}, v{s0}, v{s0 + 1}')
    for ft in range(4):
        for dt in range(2):
            d = vr(KV + (ft * 2 + dt) * 4, 4)
            a.op(f'v_mfma_f32_16x16x32_bf16 {d}, {vr(PH + 4 * ft, 4)}, {vr(VB + 4 * dt, 4)}, {d}')
    a.op(f's_xor_b32 s41, s41, {XBUF}')
    a.op('s_waitcnt vmcnt(0)')
    lwrite()
    a.op('s_waitcnt lgkmcnt(0)')
    a.op('s_barrier')
    a.op('s_add_u32 s40, s40, 1')
    a.op('s_cmp_lt_u32 s40, 4')
    a.op(f's_cbranch_scc1 {loop}')
    a.raw(f"""
    s_lshl_b32 s37, s31, 4
    s_add_u32 s37, s37, s30
    s_lshl_b32 s37, s37, 13
    s_add_u32 s37, s37, {KVP_OFF}
    s_add_u32 s38, s37, 4096
    v_lshlrev_b32 v5, 8, v4
    v_lshl_add_u32 v5, v3, 4, v5
    """)
    for ft in range(4):
        for dt in range(2):
            a.op(f'buffer_store_dwordx4 {vr(KV + (ft * 2 + dt) * 4, 4)}, v5, {SRD_W}, {"s37" if dt == 0 else "s38"} offen offset:{ft * 64}{sc}')


def r_task(a, s_task, tag, sc=''):
    a.raw(f"""
    s_lshl_b32 s30, {s_task}, 2
    s_add_u32 s30, s30, s20
    s_lshl_b32 s37, s30, 13
    s_add_u32 s37, s37, {KVP_OFF}
    v_lshlrev_b32 v5, 8, v4
    v_lshl_add_u32 v5, v3, 4, v5
    v_add_u32 v6, 4096, v5
    s_mov_b32 s40, 0
    """)
    AC, L = 16, 48
    for k in range(32):
        a.op(f'v_mov_b32 v{AC + k}, 0')
    loop = f'L_r_loop_{tag}'
    a.label(loop)
    for c in range(4):
        for dt in range(2):
            for ft in range(4):
                a.op(f'buffer_load_dwordx4 {vr(L + c * 32 + (dt * 4 + ft) * 4, 4)}, v{5 + dt}, {SRD_W}, s37 offen offset:{ft * 64}{sc}')
        a.op('s_add_u32 s37, s37, 131072')
    a.op('s_waitcnt vmcnt(0)')
    for c in range(4):
        for k in range(0, 32, 2):
            a.op(f'v_pk_add_f32 {vr(AC + k, 2)}, {vr(AC + k, 2)}, {vr(L + c * 32 + k, 2)}')
    a.op('s_add_u32 s40, s40, 1')
    a.op('s_cmp_lt_u32 s40, 4')
    a.op(f's_cbranch_scc1 {loop}')
    a.raw(f"""
    s_lshl_b32 s37, s30, 12
    s_add_u32 s37, s37, {KVF_OFF}
    v_lshlrev_b32 v5, 4, v1
    """)
    for dt in range(2):
        for sg in range(2):
            b = AC + (dt * 4 + 2 * sg) * 4
            o = L + (dt * 2 + sg) * 4
            for k in range(4):
                a.op(f'v_cvt_pk_bf16_f32 v{o + k}, v{b + 2 * k}, v{b + 2 * k + 1}')
            a.op(f'buffer_store_dwordx4 {vr(o, 4)}, v5, {SRD_W}, s37 offen offset:{(dt * 2 + sg) * 1024}{sc}')


def b2_task(a, s_task, tag, sc=''):
    WB0, WB1, D, KA, PB, N2, T = 16, 128, 0, 0, 0, 0, 0
    a.raw(f"""
    s_mul_i32 s33, {s_task}, 28672
    s_add_u32 s34, s33, 14336
    v_mul_u32_u24 v5, 896, v4
    v_lshl_add_u32 v5, v3, 4, v5
    s_lshl_b32 s36, s20, 7
    s_mul_i32 s36, s36, 896
    s_add_u32 s36, s36, {WBT_OFF}
    s_lshl_b32 s38, s20, 14
    s_add_u32 s38, s38, {KVF_OFF}
    v_lshlrev_b32 v10, 4, v1
    s_lshl_b32 s37, s20, 13
    v_add_u32 v11, s37, v10
    s_mov_b32 s43, {LOG2E}
    s_mov_b32 s44, 0
    s_mov_b32 s45, 0xffff0000
    v_mov_b32 v2, 0xff800000
    v_mov_b32 v7, 0x7f800000
    s_mov_b32 s46, 0x358637bd
    """)
    for rt in range(2):
        for ks in range(14):
            a.op(f'buffer_load_dwordx4 {ar((rt * 14 + ks) * 4, 4)}, v5, {SRD_X}, {"s33" if rt == 0 else "s34"} offen offset:{ks * 64}')

    def wload(b):
        for jt in range(2):
            for ks in range(14):
                a.op(f'buffer_load_dwordx4 {vr(b + (jt * 14 + ks) * 4, 4)}, v5, {SRD_W}, s36 offen offset:{ks * 64}')
            a.op('s_add_u32 s36, s36, 14336')
    WBUF = 16
    D, KA, PB, N2, T = 128, 144, 160, 176, 192
    wload(WBUF)
    for hh in range(4):
        for i in range(4):
            a.op(f'buffer_load_dwordx4 {vr(KA + 4 * i, 4)}, v10, {SRD_W}, s38 offen offset:{i * 1024}{sc}')
        a.op('s_add_u32 s38, s38, 4096')
        a.op('s_waitcnt vmcnt(4)')
        for ks in range(14):
            for jt in range(2):
                for rt in range(2):
                    d = vr(D + (rt * 2 + jt) * 4, 4)
                    a.op(f'v_mfma_f32_16x16x32_bf16 {d}, {vr(WBUF + (jt * 14 + ks) * 4, 4)}, {ar((rt * 14 + ks) * 4, 4)}, {"0" if ks == 0 else d}')
        a.op('s_waitcnt vmcnt(0)')
        if hh < 3:
            wload(WBUF)
        for rt in range(2):
            x = D + rt * 8
            MX, MNn, T1, T2 = T, T + 1, T + 2, T + 3
            E = T + 4
            a.op(f'v_max3_f32 v{MX}, v{x + 4}, v{x + 5}, v{x + 6}')
            a.op(f'v_max_f32 v{MX}, v{MX}, v{x + 7}')
            a.op(f'v_min3_f32 v{MNn}, v{x + 4}, v{x + 5}, v{x + 6}')
            a.op(f'v_min_f32 v{MNn}, v{MNn}, v{x + 7}')
            a.op(f'v_cndmask_b32 v{MX}, v{MX}, v2, s[44:45]')
            a.op(f'v_cndmask_b32 v{MNn}, v{MNn}, v7, s[44:45]')
            a.op(f'v_max3_f32 v{MX}, v{MX}, v{x}, v{x + 1}')
            a.op(f'v_max3_f32 v{MX}, v{MX}, v{x + 2}, v{x + 3}')
            a.op(f'v_min3_f32 v{MNn}, v{MNn}, v{x}, v{x + 1}')
            a.op(f'v_min3_f32 v{MNn}, v{MNn}, v{x + 2}, v{x + 3}')

            def xr(op, v):
                a.op(f'v_mov_b32 v{T1}, v{v}')
                a.op(f'v_mov_b32 v{T2}, v{v}')
                a.op(f'v_permlane16_swap_b32 v{T1}, v{T2}')
                a.op(f'{op} v{T1}, v{T1}, v{T2}')
                a.op(f'v_mov_b32 v{T2}, v{T1}')
                a.op(f'v_permlane32_swap_b32 v{T1}, v{T2}')
                a.op(f'{op} v{v}, v{T1}, v{T2}')
            xr('v_max_f32', MX)
            xr('v_min_f32', MNn)
            for k in range(8):
                a.op(f'v_sub_f32 v{E + k}, v{x + k}, v{MX}')
                a.op(f'v_sub_f32 v{E + 8 + k}, v{MNn}, v{x + k}')
            for k in range(16):
                a.op(f'v_mul_f32 v{E + k}, s43, v{E + k}')
            for k in range(16):
                a.op(f'v_exp_f32 v{E + k}, v{E + k}')
            for k in (4, 5, 6, 7, 12, 13, 14, 15):
                a.op(f'v_cndmask_b32 v{E + k}, v{E + k}, 0, s[44:45]')
            for sg, S in ((0, MX), (1, MNn)):
                a.op(f'v_add_f32 v{S}, v{E + 8 * sg}, v{E + 8 * sg + 1}')
                for k in range(2, 8):
                    a.op(f'v_add_f32 v{S}, v{S}, v{E + 8 * sg + k}')
                xr('v_add_f32', S)
                a.op(f'v_rcp_f32 v{S}, v{S}')
                for k in range(8):
                    a.op(f'v_mul_f32 v{E + 8 * sg + k}, v{E + 8 * sg + k}, v{S}')
                for k in range(4):
                    a.op(f'v_cvt_pk_bf16_f32 v{PB + 4 * sg + k}, v{E + 8 * sg + 2 * k}, v{E + 8 * sg + 2 * k + 1}')
            for dt in range(2):
                d = vr(N2 + 4 * dt, 4)
                a.op(f'v_mfma_f32_16x16x32_bf16 {d}, {vr(KA + (dt * 2) * 4, 4)}, {vr(PB, 4)}, 0')
                a.op(f'v_mfma_f32_16x16x32_bf16 {d}, {vr(KA + (dt * 2 + 1) * 4, 4)}, {vr(PB + 4, 4)}, {d}')
            a.op(f'v_mov_b32 v{T1}, v{N2 + 4}')
            a.op(f'v_mov_b32 v{T2}, v{N2 + 4}')
            a.op(f'v_permlane32_swap_b32 v{T1}, v{T2}')
            a.op(f'v_mov_b32 v{T1}, v{T2}')
            a.op(f'v_permlane16_swap_b32 v{T1}, v{T2}')
            a.op(f'v_add_f32 v{T2}, s46, v{T2}')
            a.op(f'v_rcp_f32 v{T2}, v{T2}')
            for k in range(8):
                a.op(f'v_mul_f32 v{N2 + k}, v{N2 + k}, v{T2}')
            for k in range(4):
                a.op(f'v_cvt_pk_bf16_f32 v{E + k}, v{N2 + 2 * k}, v{N2 + 2 * k + 1}')
            a.op(f'ds_write_b128 v11, {vr(E, 4)} offset:{(hh * 2 + rt) * 1024}')
    a.op('s_waitcnt lgkmcnt(0)')
    a.op('s_barrier')
    OB, WA, DO = 16, 144, 208
    for i in range(32):
        a.op(f'ds_read_b128 {vr(OB + 4 * i, 4)}, v10 offset:{i * 1024}')
    a.raw(f"""
    v_lshlrev_b32 v12, 10, v4
    v_lshl_add_u32 v12, v3, 4, v12
    s_mul_i32 s37, s20, {7 * 16384}
    s_add_u32 s37, s37, {WOT_OFF}
    s_lshl_b32 s39, {s_task}, 5
    v_add_u32 v13, s39, v4
    v_mul_u32_u24 v13, 1792, v13
    v_lshl_add_u32 v13, v3, 3, v13
    v_add_u32 v13, 896, v13
    v_add_u32 v14, 28672, v13
    s_mul_i32 s40, s20, 224
    s_mov_b32 s41, 0
    """)
    loop = f'L_b2_loop_{tag}'
    a.label(loop)
    for h in range(16):
        a.op(f'buffer_load_dwordx4 {vr(WA + 4 * h, 4)}, v12, {SRD_W}, s37 offen offset:{h * 64}')
    a.op('s_waitcnt lgkmcnt(0)')
    for h in range(16):
        a.op(f's_waitcnt vmcnt({15 - h})')
        for rt in range(2):
            d = vr(DO + 4 * rt, 4)
            a.op(f'v_mfma_f32_16x16x32_bf16 {d}, {vr(WA + 4 * h, 4)}, {vr(OB + (h * 2 + rt) * 4, 4)}, {"0" if h == 0 else d}')
    for rt in range(2):
        a.op(f'v_cvt_pk_bf16_f32 v{DO + 8 + 2 * rt}, v{DO + 4 * rt}, v{DO + 4 * rt + 1}')
        a.op(f'v_cvt_pk_bf16_f32 v{DO + 9 + 2 * rt}, v{DO + 4 * rt + 2}, v{DO + 4 * rt + 3}')
        a.op(f'buffer_store_dwordx2 {vr(DO + 8 + 2 * rt, 2)}, v{13 + rt}, {SRD_O}, s40 offen')
    a.op('s_add_u32 s37, s37, 16384')
    a.op('s_add_u32 s40, s40, 32')
    a.op('s_add_u32 s41, s41, 1')
    a.op('s_cmp_lt_u32 s41, 7')
    a.op(f's_cbranch_scc1 {loop}')
```

```python
from asmdsl import Asm, vr, ar, sr
from layout import *

CSCALE = 0x3DB8AA3B


def srd(a, base, ptr, nbytes):
    a.op(f's_mov_b32 s{base}, s{ptr}')
    a.op(f's_mov_b32 s{base + 1}, s{ptr + 1}')
    a.op(f's_mov_b32 s{base + 2}, {nbytes}')
    a.op(f's_mov_b32 s{base + 3}, 0x00020000')


def prep_kernel(name):
    a = Asm()
    a.label(name)
    a.raw(f"""
    s_cmp_ge_u32 s2, 256
    s_cbranch_scc1 L_prep_end
    s_load_dwordx4 s[4:7], s[0:1], 8
    s_load_dwordx4 s[8:11], s[0:1], 24
    s_load_dwordx2 s[12:13], s[0:1], 40
    s_load_dwordx4 s[16:19], s[0:1], 64
    s_load_dwordx2 s[20:21], s[0:1], 80
    s_load_dwordx2 s[22:23], s[0:1], 104
    v_lshrrev_b32 v3, 6, v0
    v_and_b32 v1, 63, v0
    v_readfirstlane_b32 s3, v3
    v_lshrrev_b32 v3, 4, v1
    v_and_b32 v4, 15, v1
    s_waitcnt lgkmcnt(0)
    """)
    srd(a, 24, 22, WS_BYTES)
    a.op('s_cmp_lg_u32 s3, 3')
    a.op('s_cbranch_scc1 L_prep_noxf')
    a.op('s_load_dwordx2 s[14:15], s[0:1], 0')
    a.op('s_waitcnt lgkmcnt(0)')
    srd(a, 28, 14, 1835008)
    a.raw(f"""
    s_lshr_b32 s40, s2, 2
    s_and_b32 s41, s2, 3
    s_mul_i32 s40, s40, 28672
    s_mul_i32 s42, s41, 160
    s_add_u32 s42, s42, s40
    s_add_u32 s43, s42, 14336
    s_lshl_b32 s46, s41, 6
    s_add_u32 s46, s46, s40
    s_add_u32 s46, s46, 640
    s_add_u32 s47, s46, 14336
    v_mul_u32_u24 v5, 896, v4
    v_lshl_add_u32 v6, v3, 3, v5
    v_lshl_add_u32 v5, v3, 4, v5
    s_mul_i32 s44, s41, 7168
    s_add_u32 s44, s44, s40
    s_add_u32 s44, s44, {XF_OFF}
    s_add_u32 s45, s44, 2560
    s_add_u32 s48, s44, 5120
    v_lshlrev_b32 v7, 4, v1
    v_lshlrev_b32 v8, 3, v1
    """)
    for kt in range(2):
        for pp in range(2):
            a.op(f'buffer_load_dwordx4 {vr(16 + kt * 16 + 4 * pp, 4)}, v5, s[28:31], s{42 + kt} offen offset:{pp * 64}')
        a.op(f'buffer_load_dwordx2 {vr(16 + kt * 16 + 8, 2)}, v6, s[28:31], s{42 + kt} offen offset:128')
        a.op(f'buffer_load_dwordx4 {vr(16 + kt * 16 + 12, 4)}, v5, s[28:31], s{46 + kt} offen')
    a.op('s_waitcnt vmcnt(0)')
    for kt in range(2):
        for pp in range(2):
            a.op(f'buffer_store_dwordx4 {vr(16 + kt * 16 + 4 * pp, 4)}, v7, s[24:27], s{44 + kt} offen offset:{pp * 1024}')
        a.op(f'buffer_store_dwordx2 {vr(16 + kt * 16 + 8, 2)}, v8, s[24:27], s{44 + kt} offen offset:2048')
        a.op(f'buffer_store_dwordx4 {vr(16 + kt * 16 + 12, 4)}, v7, s[24:27], s48 offen offset:{kt * 1024}')
    a.label('L_prep_noxf')
    a.op('s_cmp_ge_u32 s2, 224')
    a.op('s_cbranch_scc1 L_prep_b')
    a.raw(f"""
    s_mul_hi_u32 s40, s2, 0x12492493
    s_mul_i32 s41, s40, 14
    s_sub_u32 s41, s2, s41
    s_cmp_ge_u32 s41, 7
    s_cselect_b32 s42, 1, 0
    s_mul_i32 s43, s42, 7
    s_sub_u32 s43, s41, s43
    """)
    a.raw(f"""
    s_lshl_b32 s44, s43, 6
    s_lshl_b32 s45, s40, 9
    s_cmp_eq_u32 s42, 0
    s_cselect_b32 s28, s6, s10
    s_cselect_b32 s29, s7, s11
    s_mov_b32 s30, 3670016
    s_mov_b32 s31, 0x00020000
    """)
    srd(a, 32, 8, 3670016)
    srd(a, 36, 12, 3670016)
    BF = 16
    a.raw(f"""
    v_lshlrev_b32 v6, 13, v4
    v_lshl_add_u32 v6, v3, 4, v6
    v_add_u32 v6, s45, v6
    s_mul_i32 s49, s3, {7 * 131072}
    """)
    a.op('s_cmp_eq_u32 s42, 0')
    a.op('s_cbranch_scc0 L_prep_bo')
    a.raw(f"""
    s_lshl_b32 s46, s44, 13
    """)
    for nt in range(4):
        for ks in range(8):
            a.op(f'buffer_load_dwordx4 {vr(BF + (nt * 8 + ks) * 4, 4)}, v6, s[32:35], s46 offen offset:{ks * 64}')
        a.op('s_add_u32 s46, s46, 131072')
    for i in range(7):
        for ks in range(8):
            a.op(f'buffer_load_dwordx4 {ar((i * 8 + ks) * 4, 4)}, v6, s[28:31], s49 offen offset:{ks * 64}')
        a.op('s_add_u32 s49, s49, 131072')
    a.op('s_branch L_prep_bdone')
    a.label('L_prep_bo')
    a.raw(f"""
    s_mul_i32 s46, s40, 229376
    s_lshl_b32 s47, s43, 7
    s_add_u32 s46, s46, s47
    v_lshrrev_b32 v5, 3, v0
    v_mul_u32_u24 v5, 896, v5
    v_and_b32 v7, 7, v0
    v_lshl_add_u32 v5, v7, 4, v5
    v_lshlrev_b32 v7, 4, v0
    """)
    for i in range(8):
        a.op(f'buffer_load_dwordx4 {vr(144 + 4 * i, 4)}, v5, s[36:39], s46 offen')
        a.op('s_add_u32 s46, s46, 28672')
    for i in range(7):
        for ks in range(8):
            a.op(f'buffer_load_dwordx4 {ar((i * 8 + ks) * 4, 4)}, v6, s[28:31], s49 offen offset:{ks * 64}')
        a.op('s_add_u32 s49, s49, 131072')
    a.op('s_waitcnt vmcnt(56)')
    for i in range(8):
        a.op(f'ds_write_b128 v7, {vr(144 + 4 * i, 4)} offset:{i * 4096}')
    a.op('s_waitcnt lgkmcnt(0)')
    a.op('s_barrier')
    a.raw(f"""
    v_lshrrev_b32 v5, 2, v4
    v_lshl_add_u32 v5, v3, 3, v5
    v_lshlrev_b32 v5, 7, v5
    v_and_b32 v7, 3, v4
    v_lshl_add_u32 v5, v7, 3, v5
    """)
    for nt in range(4):
        for ks in range(8):
            for m in range(2):
                a.op(f'ds_read_b64_tr_b16 {vr(BF + (nt * 8 + ks) * 4 + 2 * m, 2)}, v5 offset:{ks * 4096 + m * 512 + nt * 32}')
        a.op('s_waitcnt lgkmcnt(0)')
    a.label('L_prep_bdone')
    a.raw(f"""
    s_mul_i32 s46, s40, 896
    s_mul_i32 s47, s42, 448
    s_add_u32 s46, s46, s47
    s_add_u32 s46, s46, s44
    v_add_u32 v7, s46, v4
    s_movk_i32 s47, 896
    v_mul_lo_u32 v7, v7, s47
    v_lshl_add_u32 v7, v3, 3, v7
    s_mul_i32 s47, s3, 224
    s_add_u32 s47, s47, {WT_OFF}
    v_add_u32 v7, s47, v7
    s_mov_b32 s48, {CSCALE}
    s_cmp_eq_u32 s42, 0
    s_cselect_b32 s48, s48, 1.0
    """)
    D = 144
    nst = 0
    for i in range(7):
        a.op(f's_waitcnt vmcnt({min(63, (6 - i) * 8 + nst)})')
        for ks in range(8):
            for nt in range(4):
                d = vr(D + (i % 2) * 16 + 4 * nt, 4)
                a.op(f'v_mfma_f32_16x16x32_bf16 {d}, {ar((i * 8 + ks) * 4, 4)}, {vr(BF + (nt * 8 + ks) * 4, 4)}, {"0" if ks == 0 else d}')
        for nt in range(4):
            d = D + (i % 2) * 16 + 4 * nt
            o = D + 32 + (i % 2) * 8 + 2 * nt
            for r in range(4):
                a.op(f'v_mul_f32 v{d + r}, s48, v{d + r}')
            a.op(f'v_cvt_pk_bf16_f32 v{o}, v{d}, v{d + 1}')
            a.op(f'v_cvt_pk_bf16_f32 v{o + 1}, v{d + 2}, v{d + 3}')
            a.op(f's_mov_b32 s50, {nt * 14336}')
            a.op(f'buffer_store_dwordx2 {vr(o, 2)}, v7, s[24:27], s50 offen offset:{i * 32}')
            nst += 1
    a.raw(f"""
    v_mov_b32 v16, -1
    v_mov_b32 v17, -1
    v_mov_b32 v18, -1
    v_mov_b32 v19, -1
    v_lshlrev_b32 v5, 4, v0
    s_mul_i32 s46, s2, 36864
    s_add_u32 s46, s46, {AR_OFF + ARSTEP}
    """)
    a.op(f's_sub_u32 s46, s46, {ARSTEP - 8192}')
    for i in range(9):
        a.op(f'buffer_store_dwordx4 v[16:19], v5, s[24:27], s46 offen')
        a.op('s_add_u32 s46, s46, 4096')
    a.op('s_branch L_prep_end')

    a.label('L_prep_b')
    a.op('s_cmp_ge_u32 s2, 236')
    a.op('s_cbranch_scc1 L_prep_c')
    srd(a, 28, 16, 1204224)
    srd(a, 32, 18, 25088)
    a.raw(f"""
    s_sub_u32 s40, s2, 224
    s_lshl_b32 s40, s40, 2
    s_add_u32 s40, s40, s3
    s_lshr_b32 s41, s40, 4
    s_and_b32 s42, s40, 15
    """)
    BF = 16
    for k in range(8):
        a.op(f'v_mov_b32 v{BF + k}, 0')
    a.op('s_cmp_eq_u32 s41, 2')
    a.op('s_cbranch_scc1 L_prep_ident')
    a.raw(f"""
    s_mul_i32 s43, s42, 1568
    v_mul_u32_u24 v5, 448, v3
    v_lshl_add_u32 v5, v4, 1, v5
    v_add_u32 v5, s43, v5
    v_mov_b32 v8, 0x7ff00000
    """)
    for jt in range(2):
        for i in range(8):
            a.op(f'v_mov_b32 v6, v5')
            if i >= 4:
                a.op('v_cmp_eq_u32 vcc, 3, v3')
                a.op('v_cndmask_b32 v6, v6, v8, vcc')
            if jt == 1:
                a.op('v_cmp_lt_u32 vcc, 11, v4')
                a.op('v_cndmask_b32 v6, v6, v8, vcc')
            a.op(f'buffer_load_ushort v{48 + 8 * jt + i}, v6, s[32:35], 0 offen offset:{i * 56 + jt * 32}')
    a.op('s_waitcnt vmcnt(0)')
    for k in range(8):
        a.op(f'v_lshl_or_b32 v{BF + k}, v{48 + 2 * k + 1}, 16, v{48 + 2 * k}')
    a.op('s_branch L_prep_identdone')
    a.label('L_prep_ident')
    a.op('v_lshlrev_b32 v5, 3, v3')
    for jt in range(2):
        for i in range(8):
            a.op(f'v_add_u32 v6, {i - 16 * jt}, v5')
            a.op('v_cmp_eq_u32 vcc, v6, v4')
            a.op(f'v_mov_b32 v7, {0x3f80 if i % 2 == 0 else 0x3f800000}')
            a.op('v_cndmask_b32 v7, 0, v7, vcc')
            if jt == 1 and i >= 4:
                a.op('v_cmp_gt_u32 vcc, 3, v3')
                a.op('v_cndmask_b32 v7, 0, v7, vcc')
            a.op(f'v_or_b32 v{BF + 4 * jt + i // 2}, v{BF + 4 * jt + i // 2}, v7')
    a.label('L_prep_identdone')
    a.raw(f"""
    s_mul_i32 s43, s41, 896
    s_mul_i32 s44, s42, 56
    s_add_u32 s43, s43, s44
    s_movk_i32 s44, 2688
    v_mul_lo_u32 v6, v4, s44
    v_lshl_add_u32 v6, v3, 4, v6
    v_add_u32 v6, s43, v6
    s_lshl_b32 s43, s41, 9
    s_lshl_b32 s44, s42, 5
    s_add_u32 s43, s43, s44
    v_add_u32 v7, s43, v4
    s_movk_i32 s44, 896
    v_mul_lo_u32 v7, v7, s44
    v_lshl_add_u32 v7, v3, 3, v7
    v_add_u32 v7, {WBT_OFF}, v7
    v_add_u32 v8, 14336, v7
    s_mov_b32 s49, 0
    s_mov_b32 s50, 0
    s_mov_b32 s51, 0
    """)
    a.label('L_prep_bloop')
    for i in range(14):
        a.op(f'buffer_load_dwordx4 {vr(48 + 4 * i, 4)}, v6, s[28:31], s49 offen')
        a.op('s_add_u32 s49, s49, 43008')
    for i in range(14):
        a.op(f's_waitcnt vmcnt({13 - i + 2 * i})' if 13 + i < 64 else 's_waitcnt vmcnt(0)')
        for jt in range(2):
            a.op(f'v_mfma_f32_16x16x32_bf16 {vr(36 + 4 * jt, 4)}, {vr(48 + 4 * i, 4)}, {vr(BF + 4 * jt, 4)}, 0')
        for jt in range(2):
            a.op(f'v_cvt_pk_bf16_f32 v{44 + 2 * jt}, v{36 + 4 * jt}, v{37 + 4 * jt}')
            a.op(f'v_cvt_pk_bf16_f32 v{45 + 2 * jt}, v{38 + 4 * jt}, v{39 + 4 * jt}')
            a.op(f'buffer_store_dwordx2 {vr(44 + 2 * jt, 2)}, v{7 + jt}, s[24:27], s50 offen offset:{i * 32}')
    a.op('s_add_u32 s50, s50, 448')
    a.op('s_add_u32 s51, s51, 1')
    a.op('s_cmp_lt_u32 s51, 2')
    a.op('s_cbranch_scc1 L_prep_bloop')
    a.op('s_branch L_prep_end')

    a.label('L_prep_c')
    srd(a, 28, 20, 401408)
    srd(a, 32, 4, 7168)
    a.raw(f"""
    s_sub_u32 s40, s2, 236
    s_lshl_b32 s41, s40, 8
    v_add_u32 v5, s41, v0
    s_mov_b32 s51, 0
    v_mov_b32 v12, 0x7ff00000
    """)
    a.label('L_prep_wloop')
    for i in range(8):
        a.raw(f"""
        v_lshrrev_b32 v6, 8, v5
        v_and_b32 v7, 255, v5
        v_lshrrev_b32 v8, 4, v7
        v_and_b32 v9, 15, v7
        v_mul_u32_u24 v8, 28, v8
        v_and_b32 v10, 12, v9
        v_and_b32 v11, 1, v9
        v_lshl_add_u32 v10, v11, 1, v10
        v_bfe_u32 v11, v9, 1, 1
        v_lshl_add_u32 v10, v11, 4, v10
        v_add_u32 v8, v8, v10
        v_mul_u32_u24 v8, 896, v8
        v_lshl_add_u32 v8, v6, 1, v8
        v_cmp_lt_u32 vcc, 27, v10
        v_cndmask_b32 v8, v8, v12, vcc
        v_cmp_lt_u32 vcc, 447, v6
        v_cndmask_b32 v8, v8, v12, vcc
        buffer_load_ushort v{20 + i}, v8, s[28:31], 0 offen
        buffer_load_ushort v{30 + i}, v8, s[28:31], 0 offen offset:896
        v_lshlrev_b32 v{40 + i}, 2, v5
        v_add_u32 v{40 + i}, {WOT_OFF}, v{40 + i}
        v_cndmask_b32 v{40 + i}, v{40 + i}, v12, vcc
        v_add_u32 v5, 5120, v5
        """)
    a.op('s_waitcnt vmcnt(0)')
    for i in range(8):
        a.op(f'v_lshl_or_b32 v{20 + i}, v{30 + i}, 16, v{20 + i}')
        a.op(f'buffer_store_dword v{20 + i}, v{40 + i}, s[24:27], 0 offen')
    a.raw("""
    s_add_u32 s51, s51, 1
    s_cmp_lt_u32 s51, 3
    s_cbranch_scc1 L_prep_wloop
    """)
    a.raw(f"""
    v_mov_b32 v16, -1
    v_mov_b32 v17, -1
    v_mov_b32 v18, -1
    v_mov_b32 v19, -1
    v_lshlrev_b32 v5, 4, v0
    s_cmp_ge_u32 s40, 16
    s_cbranch_scc1 L_prep_c2
    s_lshl_b32 s41, s40, 15
    s_add_u32 s41, s41, {HB_OFF}
    s_cmp_eq_u32 s40, 0
    s_cbranch_scc1 L_prep_r2
    buffer_store_dwordx4 v[16:19], v5, s[24:27], s41 offen
    s_add_u32 s42, s41, 4096
    buffer_store_dwordx4 v[16:19], v5, s[24:27], s42 offen
    """)
    a.label('L_prep_r2')
    for i in range(2, 8):
        a.op(f's_add_u32 s42, s41, {i * 4096}')
        a.op('buffer_store_dwordx4 v[16:19], v5, s[24:27], s42 offen')
    a.op('s_cmp_lg_u32 s40, 0')
    a.op('s_cbranch_scc1 L_prep_end')
    a.label('L_prep_m0')
    a.raw(f"""
    v_bfe_u32 v6, v0, 6, 1
    v_lshlrev_b32 v7, 6, v6
    v_bfe_u32 v6, v0, 1, 1
    v_lshl_add_u32 v7, v6, 5, v7
    v_bfe_u32 v6, v0, 7, 1
    v_lshl_add_u32 v7, v6, 4, v7
    v_and_b32 v6, 1, v0
    v_lshl_add_u32 v7, v6, 3, v7
    v_bfe_u32 v6, v0, 5, 1
    v_lshl_add_u32 v7, v6, 2, v7
    v_bfe_u32 v6, v0, 2, 3
    v_mul_u32_u24 v6, 896, v6
    v_add_u32 v7, v7, v6
    v_lshlrev_b32 v8, 2, v0
    """)
    for i in range(7):
        a.op(f'buffer_load_dword v{20 + i}, v7, s[32:35], 0 offen offset:{i * 128}')
        a.op(f'buffer_load_dword v{30 + i}, v8, s[32:35], 0 offen offset:{i * 1024}' if i < 4 else f'buffer_load_dword v{30 + i}, v9, s[32:35], 0 offen offset:{(i - 4) * 1024}')
        if i == 3:
            a.op('v_add_u32 v9, 4096, v8')
    a.op('s_waitcnt vmcnt(0)')
    a.op(f's_mov_b32 s41, {HB_OFF + MEMF}')
    a.op(f's_mov_b32 s42, {AR_OFF + AR_MEMN}')
    for i in range(7):
        a.op(f'buffer_store_dword v{20 + i}, v8, s[24:27], s41 offen')
        a.op(f'buffer_store_dword v{30 + i}, v8, s[24:27], s42 offen')
        a.op('s_add_u32 s41, s41, 1024')
        a.op('s_add_u32 s42, s42, 1024')
    a.op('s_branch L_prep_end')
    a.label('L_prep_c2')
    a.op('s_cmp_lg_u32 s40, 16')
    a.op('s_cbranch_scc1 L_prep_end')
    a.raw(f"""
    v_mov_b32 v16, 0
    v_mov_b32 v17, 0
    v_mov_b32 v18, 0
    v_mov_b32 v19, 0
    s_mov_b32 s41, {FLG_M}
    """)
    for i in range(10):
        a.op('buffer_store_dwordx4 v[16:19], v5, s[24:27], s41 offen')
        a.op('s_add_u32 s41, s41, 4096')
    a.label('L_prep_end')
    a.op('s_endpgm')
    return a.text()
```

```python
from asmdsl import Asm, vr, ar, sr
from layout import *
from prep import srd

LDS_BYTES = 65536
XROW = 912
XBUF = 32 * XROW

SRD_X = 's[12:15]'
SRD_W = 's[16:19]'
SRD_O = 's[24:27]'


def prologue(a, xarg=0):
    a.raw(f"""
    s_load_dwordx2 s[4:5], s[0:1], {xarg}
    s_load_dwordx2 s[6:7], s[0:1], 88
    s_load_dwordx2 s[8:9], s[0:1], 104
    v_lshrrev_b32 v3, 6, v0
    v_and_b32 v1, 63, v0
    v_readfirstlane_b32 s20, v3
    v_lshrrev_b32 v3, 4, v1
    v_and_b32 v4, 15, v1
    s_waitcnt lgkmcnt(0)
    """)
    srd(a, 12, 4, 1835008)
    srd(a, 16, 8, WS_BYTES)
    srd(a, 24, 6, 3670016)


def signal(a, soff, vt):
    a.op(f'v_mov_b32 v{vt}, 1')
    a.op(f'v_mov_b32 v{vt + 1}, 0')
    a.op('s_mov_b64 exec, 1')
    a.op(f'buffer_atomic_add v{vt}, v{vt + 1}, {SRD_W}, {soff} offen sc1')
    a.op('s_mov_b64 exec, -1')


def cntwait(a, off, target, vt, tag):
    lp, ok = a.newlabel('L_cw_' + tag), a.newlabel('L_cwok_' + tag)
    a.op(f'v_mov_b32 v{vt + 1}, {off}')
    a.op('s_mov_b32 s49, 2000000')
    a.label(lp)
    a.op(f'buffer_load_dword v{vt}, v{vt + 1}, {SRD_W}, 0 offen sc1')
    a.op('s_waitcnt vmcnt(0)')
    a.op(f'v_cmp_gt_u32 vcc, {target}, v{vt}')
    a.op(f's_cbranch_vccz {ok}')
    a.op('s_sleep 8')
    a.op('s_sub_u32 s49, s49, 1')
    a.op('s_cmp_lg_u32 s49, 0')
    a.op(f's_cbranch_scc1 {lp}')
    a.label(ok)


def gemm_task(a, s_task, part, tag, sc=''):
    a.raw(f"""
    s_and_b32 s30, {s_task}, 7
    s_lshr_b32 s31, {s_task}, 3
    s_lshl_b32 s31, s31, 2
    s_add_u32 s31, s31, s20
    s_mul_hi_u32 s32, s31, 0x12492493
    s_mul_i32 s33, s32, 14
    s_sub_u32 s35, s31, s33
    s_mul_i32 s36, s32, 1792
    s_lshl_b32 s37, s35, 5
    s_add_u32 s36, s36, s37
    s_add_u32 s36, s36, {part * 448}
    """)
    if part == 0:
        a.raw("""
        v_lshrrev_b32 v5, 2, v4
        v_lshlrev_b32 v5, 3, v5
        v_and_b32 v6, 3, v4
        v_add_u32 v5, v5, v6
        v_add_u32 v5, s36, v5
        """)
    else:
        a.op('v_add_u32 v5, s36, v4')
    a.raw("""
    s_movk_i32 s37, 896
    v_mul_lo_u32 v5, v5, s37
    v_lshl_add_u32 v5, v3, 4, v5
    """)
    ST0, ST1, AFR, ACC, OUT = 16, 44, 72, 88, 120
    a.raw(f"""
    v_lshlrev_b32 v15, 4, v0
    s_mul_i32 s39, s30, 28672
    """)

    def gload(st):
        for i in range(7):
            a.op(f's_add_u32 s37, s39, {i * 4096}')
            a.op(f'buffer_load_dwordx4 {vr(st + 4 * i, 4)}, v15, {SRD_X}, s37 offen')
        a.op(f's_add_u32 s39, s39, {8 * 28672}')

    def lwrite(st):
        for i in range(7):
            a.op(f'v_add_u32 v5, s41, v{8 + i}')
            a.op(f'ds_write_b128 v5, {vr(st + 4 * i, 4)}')

    gload(ST0)
    gload(ST1)
    for nt in range(4):
        hp, ct2 = nt >> 1, nt & 1
        a.op(f's_mov_b32 s37, {WT_OFF + hp * 896 * 896 + ct2 * (4 if part == 0 else 16) * 896}')
        for ks in range(14):
            a.op(f'buffer_load_dwordx4 {ar((nt * 14 + ks) * 4, 4)}, v5, {SRD_W}, s37 offen offset:{ks * 64}')
    for i in range(7):
        a.raw(f"""
        v_add_u32 v6, {256 * i}, v0
        s_mov_b32 s37, 0x04924925
        v_mul_hi_u32 v7, v6, s37
        v_mul_u32_u24 v{8 + i}, 56, v7
        v_sub_u32 v6, v6, v{8 + i}
        v_mul_u32_u24 v{8 + i}, {XROW}, v7
        v_lshl_add_u32 v{8 + i}, v6, 4, v{8 + i}
        """)
    a.raw(f"""
    v_mul_u32_u24 v6, {XROW}, v4
    v_lshl_add_u32 v6, v3, 4, v6
    v_lshlrev_b32 v7, 5, v1
    v_mul_u32_u24 v2, 896, v4
    v_lshl_add_u32 v2, v3, 4, v2
    s_lshl_b32 s37, s35, 6
    v_add_u32 v2, s37, v2
    s_mov_b32 s40, 0
    s_mov_b32 s41, 0
    s_mov_b32 s42, s30
    s_barrier
    """)
    a.op('s_waitcnt vmcnt(63)')
    lwrite(ST0)
    a.op('s_waitcnt vmcnt(0) lgkmcnt(0)')
    a.op('s_barrier')
    cnt = CNT_X if part == 1 else CNT_T
    loop = f'L_gemm_loop_{tag}'
    a.label(loop)
    for half in range(2):
        cur, nxt = (ST0, ST1) if half == 0 else (ST1, ST0)
        gload(cur)
        a.op('v_add_u32 v5, s41, v6')
        q = {}

        def rd(ks):
            b = AFR + 8 * (ks % 2)
            a.op(f'ds_read_b128 {vr(b, 4)}, v5 offset:{ks * 64}')
            q[ks] = a.op(f'ds_read_b128 {vr(b + 4, 4)}, v5 offset:{ks * 64 + 16 * XROW}')
        rd(0)
        for ks in range(14):
            if ks + 1 < 14:
                rd(ks + 1)
            a.wait_lg(q[ks])
            b = AFR + 8 * (ks % 2)
            for mt in range(2):
                for nt in range(4):
                    d = vr(ACC + (mt * 4 + nt) * 4, 4)
                    X, W = vr(b + 4 * mt, 4), ar((nt * 14 + ks) * 4, 4)
                    c = '0' if ks == 0 else d
                    if part == 1:
                        a.op(f'v_mfma_f32_16x16x32_bf16 {d}, {X}, {W}, {c}')
                    else:
                        a.op(f'v_mfma_f32_16x16x32_bf16 {d}, {W}, {X}, {c}')
        a.op('s_waitcnt vmcnt(11)')
        a.op(f's_xor_b32 s41, s41, {XBUF}')
        lwrite(nxt)
        if part == 1:
            a.raw(f"""
            s_mul_i32 s38, s42, 28
            s_lshl_b32 s37, s35, 1
            s_add_u32 s38, s38, s37
            s_lshl_b32 s38, s38, 3
            s_add_u32 s38, s38, s32
            s_lshl_b32 s38, s38, 11
            s_add_u32 s38, s38, {XVOP_OFF}
            """)
            for ct2 in range(2):
                for mt in range(2):
                    A_ = ACC + (mt * 4 + ct2) * 4
                    B_ = ACC + (mt * 4 + 2 + ct2) * 4
                    o = OUT + half * 16 + (ct2 * 2 + mt) * 4
                    a.op(f'v_cvt_pk_bf16_f32 v{o}, v{A_}, v{A_ + 1}')
                    a.op(f'v_cvt_pk_bf16_f32 v{o + 1}, v{B_}, v{B_ + 1}')
                    a.op(f'v_cvt_pk_bf16_f32 v{o + 2}, v{A_ + 2}, v{A_ + 3}')
                    a.op(f'v_cvt_pk_bf16_f32 v{o + 3}, v{B_ + 2}, v{B_ + 3}')
                    a.op(f'buffer_store_dwordx4 {vr(o, 4)}, v7, {SRD_W}, s38 offen offset:{mt * 16}{sc}')
                if ct2 == 0:
                    a.op('s_add_u32 s38, s38, 16384')
        else:
            a.raw(f"""
            s_lshl_b32 s38, s32, 12
            s_lshl_b32 s37, s42, 5
            s_add_u32 s38, s38, s37
            s_mul_i32 s38, s38, 896
            s_add_u32 s38, s38, {TX_OFF}
            """)
            for hp in range(2):
                for mt in range(2):
                    a.op(f's_add_u32 s37, s38, {hp * 2048 * 896 + mt * 16 * 896}')
                    o4 = OUT + half * 16 + (hp * 2 + mt) * 4
                    for ct2 in range(2):
                        d = ACC + (mt * 4 + hp * 2 + ct2) * 4
                        a.op(f'v_cvt_pk_bf16_f32 v{o4 + 2 * ct2}, v{d}, v{d + 1}')
                        a.op(f'v_cvt_pk_bf16_f32 v{o4 + 2 * ct2 + 1}, v{d + 2}, v{d + 3}')
                    a.op(f'buffer_store_dwordx4 {vr(o4, 4)}, v2, {SRD_W}, s37 offen{sc}')
        lf, lj, ln = f'L_gemm_f{half}_{tag}', f'L_gemm_j{half}_{tag}', f'L_gemm_n{half}_{tag}'
        a.op('s_cmp_eq_u32 s40, 0')
        a.op(f's_cbranch_scc1 {lf}')
        a.op('s_waitcnt vmcnt(11)')
        a.op('s_lshl_b32 s37, s42, 7')
        a.op(f's_add_u32 s37, s37, {cnt - 1024}')
        a.op(f's_branch {lj}')
        a.label(lf)
        a.op('s_waitcnt vmcnt(0)')
        a.op('s_lshl_b32 s37, s42, 7')
        a.op(f's_add_u32 s37, s37, {cnt}')
        a.label(lj)
        a.op('s_waitcnt lgkmcnt(0)')
        a.op('s_barrier')
        a.op('s_cmp_eq_u32 s40, 1')
        a.op(f's_cbranch_scc1 {ln}')
        a.op('s_cmp_lg_u32 s20, 0')
        a.op(f's_cbranch_scc1 {ln}')
        signal(a, 's37', AFR)
        a.label(ln)
        a.op('s_add_u32 s42, s42, 8')
        a.op('s_add_u32 s40, s40, 1')
    a.op('s_cmp_lt_u32 s40, 8')
    a.op(f's_cbranch_scc1 {loop}')
    a.op('s_waitcnt vmcnt(0)')
    a.op('s_barrier')
    ln = f'L_gemm_nf_{tag}'
    a.op('s_cmp_lg_u32 s20, 0')
    a.op(f's_cbranch_scc1 {ln}')
    a.op('s_lshl_b32 s37, s42, 7')
    a.op(f's_add_u32 s37, s37, {cnt - 1024}')
    signal(a, 's37', AFR)
    a.label(ln)


def um_server(a, s_id, tag):
    a.raw(f"""
    s_mul_hi_u32 s44, {s_id}, 0x0924924a
    s_mul_i32 s31, s44, 28
    s_sub_u32 s31, {s_id}, s31
    s_lshl_b32 s31, s31, 2
    s_add_u32 s31, s31, s20
    s_mul_hi_u32 s32, s31, 0x12492493
    s_mul_i32 s33, s32, 14
    s_sub_u32 s35, s31, s33
    s_mul_i32 s36, s32, 1792
    s_lshl_b32 s37, s35, 5
    s_add_u32 s36, s36, s37
    s_add_u32 s36, s36, 448
    v_add_u32 v5, s36, v4
    s_movk_i32 s37, 896
    v_mul_lo_u32 v5, v5, s37
    v_lshl_add_u32 v5, v3, 4, v5
    """)
    for nt in range(4):
        hp, ct2 = nt >> 1, nt & 1
        a.op(f's_mov_b32 s37, {WT_OFF + hp * 896 * 896 + ct2 * 16 * 896}')
        for ks in range(14):
            a.op(f'buffer_load_dwordx4 {ar((nt * 14 + ks) * 4, 4)}, v5, {SRD_W}, s37 offen offset:{ks * 64}')
    a.raw(f"""
    v_and_b32 v6, 7, v4
    v_mul_u32_u24 v6, 896, v6
    v_lshl_add_u32 v6, v3, 4, v6
    v_and_b32 v7, 1, v3
    v_lshlrev_b32 v7, 3, v7
    v_lshl_add_u32 v7, v4, 4, v7
    s_mul_i32 s37, s32, 14336
    s_lshl_b32 s38, s35, 9
    s_add_u32 s37, s37, s38
    v_add_u32 v7, s37, v7
    v_add_u32 v8, 7168, v7
    s_mov_b32 s40, s44
    s_mul_i32 s41, s44, {ARSTEP}
    s_add_u32 s42, s41, {UA2_OFF}
    s_add_u32 s41, s41, {AR_OFF + AR_MEMN}
    s_lshl_b32 s43, s44, 7
    s_add_u32 s43, s43, {CNT_C}
    """)
    MF, ACC, OUT = 16, 72, 88
    loop, lp, ok = f'L_um_loop_{tag}', f'L_um_p_{tag}', f'L_um_ok_{tag}'
    a.label(loop)
    a.op('s_mov_b32 s49, 1000000')
    a.label(lp)
    a.op(f'buffer_load_dwordx4 {vr(MF + 52, 4)}, v6, {SRD_W}, s41 offen offset:{13 * 64} sc1')
    a.op('s_waitcnt vmcnt(0)')
    a.op(f'v_cmp_eq_u32 vcc, -1, v{MF + 52}')
    a.op(f's_cbranch_vccnz L_um_sl_{tag}')
    for ks in range(14):
        a.op(f'buffer_load_dwordx4 {vr(MF + 4 * ks, 4)}, v6, {SRD_W}, s41 offen offset:{ks * 64} sc1')
    a.op('s_waitcnt vmcnt(0)')
    a.op(f'v_max3_u32 v9, v{MF}, v{MF + 1}, v{MF + 2}')
    for k in range(3, 55, 2):
        a.op(f'v_max3_u32 v9, v9, v{MF + k}, v{MF + k + 1}')
    a.op(f'v_max_u32 v9, v9, v{MF + 55}')
    a.op('v_cmp_eq_u32 vcc, -1, v9')
    a.op(f's_cbranch_vccz {ok}')
    a.label(f'L_um_sl_{tag}')
    a.op('s_sleep 8')
    a.op('s_sub_u32 s49, s49, 1')
    a.op('s_cmp_lg_u32 s49, 0')
    a.op(f's_cbranch_scc1 {lp}')
    a.label(ok)
    for ks in range(14):
        for nt in range(4):
            d = vr(ACC + 4 * nt, 4)
            a.op(f'v_mfma_f32_16x16x32_bf16 {d}, {vr(MF + 4 * ks, 4)}, {ar((nt * 14 + ks) * 4, 4)}, {"0" if ks == 0 else d}')
    a.op('s_mov_b32 exec_hi, 0')
    for nt in range(4):
        hp, ct2 = nt >> 1, nt & 1
        a.op(f'v_cvt_pk_bf16_f32 v{OUT + 2 * nt}, v{ACC + 4 * nt}, v{ACC + 4 * nt + 1}')
        a.op(f'v_cvt_pk_bf16_f32 v{OUT + 2 * nt + 1}, v{ACC + 4 * nt + 2}, v{ACC + 4 * nt + 3}')
        a.op(f'buffer_store_dwordx2 {vr(OUT + 2 * nt, 2)}, v{7 + hp}, {SRD_W}, s42 offen offset:{ct2 * 256} sc1')
    a.op('s_mov_b64 exec, -1')
    a.op('s_waitcnt vmcnt(0)')
    a.op('s_barrier')
    ln = f'L_um_n_{tag}'
    a.op('s_cmp_lg_u32 s20, 0')
    a.op(f's_cbranch_scc1 {ln}')
    signal(a, 's43', OUT + 8)
    a.label(ln)
    a.op(f's_add_u32 s41, s41, {3 * ARSTEP}')
    a.op(f's_add_u32 s42, s42, {3 * ARSTEP}')
    a.op('s_add_u32 s43, s43, 384')
    a.op('s_add_u32 s40, s40, 3')
    a.op('s_cmp_lt_u32 s40, 64')
    a.op(f's_cbranch_scc1 {loop}')


WSTAMP = False


def wstamp(a, s_idx, base):
    if not WSTAMP:
        return
    l = a.newlabel('L_ws')
    a.op('s_cmp_lg_u32 s20, 0')
    a.op(f's_cbranch_scc1 {l}')
    a.op('s_memrealtime s[50:51]')
    a.op(f's_lshl_b32 s52, {s_idx}, 2')
    a.op(f's_add_u32 s52, s52, {(204 << 20) + base}')
    a.op('s_waitcnt lgkmcnt(0)')
    a.op('v_mov_b32 v16, s50')
    a.op('v_mov_b32 v17, 0')
    a.op('s_mov_b64 exec, 1')
    a.op(f'buffer_store_dword v16, v17, {SRD_W}, s52 offen')
    a.op('s_mov_b64 exec, -1')
    a.label(l)


def worker_body(a, s_wi, endlabel):
    import partb
    a.raw(f"""
    s_lshl_b32 s3, s20, 6
    v_add_u32 v0, s3, v1
    v_lshrrev_b32 v3, 4, v1
    v_and_b32 v4, 15, v1
    s_load_dwordx2 s[4:5], s[0:1], 56
    s_load_dwordx2 s[6:7], s[0:1], 88
    s_cmp_ge_u32 {s_wi}, 224
    s_cbranch_scc1 {endlabel}
    """)
    wstamp(a, s_wi, 0)
    gemm_task(a, s_wi, 1, 'wu', ' sc1')
    a.op('s_cmp_lg_u32 s20, 0')
    a.op('s_cbranch_scc1 L_w_nxa')
    a.op('s_waitcnt vmcnt(0)')
    a.op(f's_mov_b32 s37, {CNT_XALL}')
    signal(a, 's37', 16)
    a.label('L_w_nxa')
    gemm_task(a, s_wi, 0, 'wt', ' sc1')
    wstamp(a, s_wi, 1024)
    a.op('s_waitcnt lgkmcnt(0)')
    srd(a, 12, 4, 1835008)
    srd(a, 24, 6, 3670016)
    real_end = endlabel
    endlabel = 'L_w_fin'
    a.op(f's_cmp_lt_u32 {s_wi}, 140')
    a.op('s_cbranch_scc1 L_w_noum')
    a.op(f's_sub_u32 s3, {s_wi}, 140')
    um_server(a, 's3', 'w')
    a.op(f's_branch {endlabel}')
    a.label('L_w_noum')
    a.op(f's_cmp_ge_u32 {s_wi}, 132')
    a.op(f's_cbranch_scc1 {endlabel}')
    a.op(f's_cmp_ge_u32 {s_wi}, 68')
    a.op('s_cbranch_scc1 L_w_b2')
    a.op(f's_cmp_ge_u32 {s_wi}, 64')
    a.op('s_cbranch_scc1 L_w_r')
    partb.b1_task(a, s_wi, 'w', ' sc1')
    a.op('s_waitcnt vmcnt(0)')
    a.op(f's_mov_b32 s37, {CNT_B1}')
    signal(a, 's37', 16)
    a.op(f's_branch {endlabel}')
    a.label('L_w_r')
    cntwait(a, CNT_B1, 256, 16, 'b1')
    a.op(f's_sub_u32 s3, {s_wi}, 64')
    partb.r_task(a, 's3', 'w', ' sc1')
    a.op('s_waitcnt vmcnt(0)')
    a.op(f's_mov_b32 s37, {CNT_R}')
    signal(a, 's37', 16)
    a.op(f's_branch {endlabel}')
    a.label('L_w_b2')
    cntwait(a, CNT_R, 16, 16, 'r')
    a.op(f's_sub_u32 s3, {s_wi}, 68')
    partb.b2_task(a, 's3', 'w', ' sc1')
    a.label('L_w_fin')
    wstamp(a, s_wi, 2048)
    a.op('s_load_dwordx2 s[4:5], s[0:1], 0')
    a.op('s_waitcnt lgkmcnt(0)')
    srd(a, 12, 4, 1835008)
    a.label('L_w_finloop')
    a.raw(f"""
    s_waitcnt vmcnt(0) lgkmcnt(0)
    s_barrier
    s_cmp_lg_u32 s20, 0
    s_cbranch_scc1 L_w_fq
    s_mov_b64 exec, 1
    v_mov_b32 v16, 1
    v_mov_b32 v17, {CNT_F}
    buffer_atomic_add v16, v17, {SRD_W}, 0 offen sc0 sc1
    s_waitcnt vmcnt(0)
    v_mov_b32 v17, 24576
    ds_write_b32 v17, v16
    s_waitcnt lgkmcnt(0)
    s_mov_b64 exec, -1
    """)
    a.label('L_w_fq')
    a.raw(f"""
    s_barrier
    v_mov_b32 v17, 24576
    ds_read_b32 v16, v17
    s_waitcnt lgkmcnt(0)
    v_readfirstlane_b32 s3, v16
    s_cmp_ge_u32 s3, 256
    s_cbranch_scc1 {real_end}
    s_lshr_b32 s48, s3, 2
    s_lshl_b32 s48, s48, 7
    """)
    wstamp(a, 's3', 3072)
    fin_task(a, 's3', 'w', merged=True)
    wstamp(a, 's3', 4096)
    a.op('s_branch L_w_finloop')


def gemm_kernel(name):
    import partb
    a = Asm()
    a.label(name)
    a.op('s_cmp_ge_u32 s2, 288')
    a.op('s_cbranch_scc1 L_gemm_end')
    a.op('s_cmp_ge_u32 s2, 224')
    a.op('s_cbranch_scc1 L_gemm_b1')
    prologue(a)
    gemm_task(a, 's2', 'g')
    a.op('s_branch L_gemm_end')
    a.label('L_gemm_b1')
    prologue(a, 56)
    a.op('s_sub_u32 s3, s2, 224')
    partb.b1_task(a, 's3', 'g')
    a.label('L_gemm_end')
    a.op('s_endpgm')
    return a.text()


def slow_wait(a, items, tag):
    lw = a.newlabel('L_fw_' + tag)
    a.op('s_cmp_lg_u32 s20, 0')
    a.op(f's_cbranch_scc1 {lw}')
    a.op('s_mov_b64 exec, 1')
    for off, tgt, slp in items:
        lp, ok = a.newlabel('L_cw_' + tag), a.newlabel('L_cwok_' + tag)
        a.op(f'v_mov_b32 v241, {off}')
        a.op('s_mov_b32 s49, 1000000')
        a.label(lp)
        a.op(f'buffer_load_dword v240, v241, {SRD_W}, s48 offen sc1')
        a.op('s_waitcnt vmcnt(0)')
        a.op(f'v_cmp_gt_u32 vcc, {tgt}, v240')
        a.op(f's_cbranch_vccz {ok}')
        a.op(f's_sleep {slp}')
        a.op('s_sub_u32 s49, s49, 1')
        a.op('s_cmp_lg_u32 s49, 0')
        a.op(f's_cbranch_scc1 {lp}')
        a.label(ok)
    a.op('s_mov_b64 exec, -1')
    a.label(lw)
    a.op('s_barrier')


def fin_task(a, s_task, tag, merged=True):
    TB = 16
    AX, AS, AM, ASM = 0, 112, 144, 200
    slow_wait(a, ((CNT_X, 28, 32), (CNT_T, 28, 32)), tag + 'a')
    a.raw(f"""
    s_lshr_b32 s30, {s_task}, 2
    s_bfe_u32 s31, {s_task}, 0x10001
    s_and_b32 s32, {s_task}, 1
    s_mul_i32 s33, s30, 28672
    s_add_u32 s35, s33, 14336
    s_mul_i32 s34, s30, {ARSTEP}
    v_mul_u32_u24 v5, 896, v4
    v_lshl_add_u32 v5, v3, 4, v5
    v_and_b32 v6, 7, v4
    v_mul_u32_u24 v6, 896, v6
    v_lshl_add_u32 v6, v3, 4, v6
    s_lshl_b32 s36, s20, 13
    s_lshl_b32 s37, s30, 5
    s_add_u32 s36, s36, s37
    s_lshl_b32 s37, s31, 4
    s_add_u32 s36, s36, s37
    s_mul_i32 s36, s36, 896
    s_add_u32 s36, s36, {TX_OFF}
    """)
    for kt in range(2):
        for ks in range(14):
            a.op(f'buffer_load_dwordx4 {ar(AX + (kt * 14 + ks) * 4, 4)}, v5, {SRD_X}, {"s33" if kt == 0 else "s35"} offen offset:{ks * 64}')
    for hh in range(4):
        for ks in range(14):
            a.op(f'buffer_load_dwordx4 {vr(TB + hh * 56 + 4 * ks, 4)}, v5, {SRD_W}, s36 offen offset:{ks * 64}')
        a.op(f's_add_u32 s36, s36, {2048 * 896}')
    a.raw(f"""
    s_mul_i32 s40, s30, 28
    s_mul_i32 s41, s32, 14
    s_add_u32 s40, s40, s41
    s_lshl_b32 s40, s40, 14
    s_mul_i32 s41, s20, 57344
    s_add_u32 s40, s40, s41
    s_add_u32 s40, s40, {XVOP_OFF}
    v_lshlrev_b32 v7, 7, v1
    """)
    for i in range(7):
        a.op(f'buffer_load_dword v242, v7, {SRD_W}, s40 offen')
        a.op('s_add_u32 s40, s40, 8192')
    a.raw(f"""
    s_lshl_b32 s37, s31, 4
    v_add_u32 v7, s37, v4
    v_lshlrev_b32 v8, 2, v3
    v_sub_u32 v7, v7, v8
    v_subrev_u32 v8, 16, v7
    v_mov_b32 v9, 0xff800000
    v_lshlrev_b32 v10, 4, v1
    s_lshl_b32 s37, s20, 12
    v_add_u32 v11, s37, v10
    v_lshlrev_b32 v12, 4, v4
    v_lshl_add_u32 v12, v3, 3, v12
    s_lshl_b32 s37, s20, 10
    s_add_u32 s37, s37, 16384
    v_add_u32 v12, s37, v12
    """)
    for hh in range(4):
        a.op(f's_waitcnt vmcnt({7 + 14 * (3 - hh)})')
        for ks in range(14):
            for kt in range(2):
                d = ar(AS + (hh * 2 + kt) * 4, 4)
                a.op(f'v_mfma_f32_16x16x32_bf16 {d}, {ar(AX + (kt * 14 + ks) * 4, 4)}, {vr(TB + hh * 56 + 4 * ks, 4)}, {"0" if ks == 0 else d}')
    slow_wait(a, ((CNT_C, 28, 12),), tag + 'b')
    a.op(f's_add_u32 s37, s34, {AR_OFF + AR_MEMN}')
    for ks in range(14):
        a.op(f'buffer_load_dwordx4 {ar(AM + 4 * ks, 4)}, v6, {SRD_W}, s37 offen offset:{ks * 64} sc1')
    for ks in range(14):
        a.op(f's_waitcnt vmcnt({13 - ks})')
        for hh in range(4):
            d = ar(ASM + 4 * hh, 4)
            a.op(f'v_mfma_f32_16x16x32_bf16 {d}, {ar(AM + 4 * ks, 4)}, {vr(TB + hh * 56 + 4 * ks, 4)}, {"0" if ks == 0 else d}')
    a.raw(f"""
    v_lshlrev_b32 v13, 5, v1
    v_mul_u32_u24 v14, 7168, v3
    v_lshl_add_u32 v14, v4, 4, v14
    s_mul_i32 s37, s32, 14
    s_add_u32 s37, s37, s20
    s_lshl_b32 s39, s30, 5
    s_lshl_b32 s40, s31, 4
    s_add_u32 s39, s39, s40
    v_add_u32 v15, s39, v4
    v_mul_u32_u24 v15, 1792, v15
    v_lshl_add_u32 v15, v3, 3, v15
    """)
    PB, PMB, X0, X1 = 16, 80, 96, 176

    def pvload(xb, ct_s):
        a.raw(f"""
        s_mul_i32 s40, s30, 28
        s_add_u32 s40, s40, {ct_s}
        s_lshl_b32 s40, s40, 14
        s_add_u32 s40, s40, {XVOP_OFF}
        s_lshl_b32 s41, {ct_s}, 8
        s_add_u32 s41, s41, s34
        s_add_u32 s41, s41, {UA2_OFF}
        """)
        for p in range(8):
            if p % 2 == 0 and p:
                a.op('s_add_u32 s40, s40, 4096')
            for kt in range(2):
                a.op(f'buffer_load_dwordx4 {vr(xb + 8 * p + 4 * kt, 4)}, v13, {SRD_W}, s40 offen offset:{(p % 2) * 2048 + kt * 16}')
        for m in range(4):
            a.op(f'buffer_load_dwordx4 {vr(xb + 64 + 4 * m, 4)}, v14, {SRD_W}, s41 offen')
            a.op('s_add_u32 s41, s41, 28672')

    a.nop(8)
    pvload(X0, 's37')
    a.op('s_add_u32 s38, s37, 4')
    pvload(X1, 's38')
    SD, PO = 16, 40
    for hh in range(4):
        for k in range(8):
            a.op(f'v_accvgpr_read_b32 v{SD + k}, a{AS + hh * 8 + k}')
        for k in range(4):
            a.op(f'v_accvgpr_read_b32 v{SD + 8 + k}, a{ASM + hh * 4 + k}')
        for kt in range(2):
            for r in range(4):
                a.op(f'v_cmp_gt_i32 vcc, {r}, v{7 + kt}')
                a.op(f'v_cndmask_b32 v{SD + 4 * kt + r}, v{SD + 4 * kt + r}, v9, vcc')
        a.op('v_cmp_lt_u32 vcc, 1, v3')
        for r in range(4):
            a.op(f'v_cndmask_b32 v{SD + 8 + r}, v{SD + 8 + r}, v9, vcc')
        M, T1, T2 = SD + 12, SD + 14, SD + 15
        a.op(f'v_max3_f32 v{M}, v{SD}, v{SD + 1}, v{SD + 2}')
        for k in range(3, 11, 2):
            a.op(f'v_max3_f32 v{M}, v{M}, v{SD + k}, v{SD + k + 1}')
        a.op(f'v_max_f32 v{M}, v{M}, v{SD + 11}')

        def xr(op):
            a.op(f'v_mov_b32 v{T1}, v{M}')
            a.op(f'v_mov_b32 v{T2}, v{M}')
            a.op(f'v_permlane16_swap_b32 v{T1}, v{T2}')
            a.op(f'{op} v{T1}, v{T1}, v{T2}')
            a.op(f'v_mov_b32 v{T2}, v{T1}')
            a.op(f'v_permlane32_swap_b32 v{T1}, v{T2}')
            a.op(f'{op} v{M}, v{T1}, v{T2}')
        xr('v_max_f32')
        for k in range(12):
            a.op(f'v_sub_f32 v{SD + k}, v{SD + k}, v{M}')
        for k in range(12):
            a.op(f'v_exp_f32 v{SD + k}, v{SD + k}')
        a.op(f'v_add_f32 v{M}, v{SD}, v{SD + 1}')
        for k in range(2, 12):
            a.op(f'v_add_f32 v{M}, v{M}, v{SD + k}')
        xr('v_add_f32')
        a.op(f'v_rcp_f32 v{M}, v{M}')
        for k in range(12):
            a.op(f'v_mul_f32 v{SD + k}, v{SD + k}, v{M}')
        hp = hh & 1
        for kt in range(2):
            a.op(f'v_cvt_pk_bf16_f32 v{PO + 4 * kt + hp}, v{SD + 4 * kt}, v{SD + 4 * kt + 1}')
            a.op(f'v_cvt_pk_bf16_f32 v{PO + 4 * kt + 2 + hp}, v{SD + 4 * kt + 2}, v{SD + 4 * kt + 3}')
        a.op(f'v_cvt_pk_bf16_f32 v{T1}, v{SD + 8}, v{SD + 9}')
        a.op(f'v_cvt_pk_bf16_f32 v{T2}, v{SD + 10}, v{SD + 11}')
        a.op('s_mov_b32 exec_hi, 0')
        a.op(f'ds_write_b64 v12, {vr(T1, 2)} offset:{hh * 256}')
        a.op('s_mov_b64 exec, -1')
        if hp == 1:
            for kt in range(2):
                a.op(f'ds_write_b128 v11, {vr(PO + 4 * kt, 4)} offset:{(hh >> 1) * 2048 + kt * 1024}')
    a.op('s_waitcnt lgkmcnt(0)')
    a.op('s_barrier')
    for i in range(16):
        a.op(f'ds_read_b128 {vr(PB + 4 * i, 4)}, v10 offset:{i * 1024}')
    for m in range(4):
        a.op(f'ds_read_b128 {vr(PMB + 4 * m, 4)}, v10 offset:{16384 + m * 1024}')
    a.op('s_waitcnt lgkmcnt(0)')
    DA = 216
    lend = f'L_fin_done_{tag}'
    for i in range(4):
        xb = X0 if i % 2 == 0 else X1
        if i == 3:
            a.op('s_cmp_ge_u32 s20, 2')
            a.op(f's_cbranch_scc1 {lend}')
        a.op(f's_waitcnt vmcnt({[20, 21, 21, 1][i]})')
        d = ar(DA + 4 * (i % 2), 4)
        for j in range(16):
            a.op(f'v_mfma_f32_16x16x32_bf16 {d}, {vr(xb + 4 * j, 4)}, {vr(PB + 4 * j, 4)}, {"0" if j == 0 else d}')
        for m in range(4):
            a.op(f'v_mfma_f32_16x16x32_bf16 {d}, {vr(xb + 64 + 4 * m, 4)}, {vr(PMB + 4 * m, 4)}, {d}')
        for k in range(4):
            a.op(f'v_accvgpr_read_b32 v{5 + k}, a{DA + 4 * (i % 2) + k}')
        a.op('v_cvt_pk_bf16_f32 v8, v7, v8')
        a.op('v_cvt_pk_bf16_f32 v6, v5, v6')
        a.op('v_mov_b32 v7, v8')
        a.op(f's_add_u32 s40, s37, {4 * i}')
        a.op('s_lshl_b32 s40, s40, 5')
        a.op(f'buffer_store_dwordx2 v[6:7], v15, {SRD_O}, s40 offen')
        if i < 2:
            a.op(f's_add_u32 s38, s37, {4 * (i + 2)}')
            pvload(xb, 's38')
    a.label(lend)


def fin_kernel(name):
    a = Asm()
    a.label(name)
    import partb
    a.op('s_cmp_ge_u32 s2, 256')
    a.op('s_cbranch_scc1 L_fin_end')
    a.op('s_cmp_ge_u32 s2, 256')
    a.op('s_cbranch_scc1 L_fin_b2')
    prologue(a)
    fin_task(a, 's2', 'f')
    a.op('s_branch L_fin_end')
    a.label('L_fin_b2')
    prologue(a, 56)
    a.op('s_sub_u32 s3, s2, 256')
    partb.b2_task(a, 's3', 'f')
    a.label('L_fin_end')
    a.op('s_endpgm')
    return a.text()


def red_kernel(name):
    import partb
    a = Asm()
    a.label(name)
    a.op('s_cmp_ge_u32 s2, 4')
    a.op('s_cbranch_scc1 L_red_end')
    prologue(a, 56)
    partb.r_task(a, 's2', 'r')
    a.label('L_red_end')
    a.op('s_endpgm')
    return a.text()
```

```python
import sys
sys.path.insert(0, 'gen')
import importlib
from chain import KD
import chain, prep
def build(path, kernels):
    out = ''
    for (n, t, g, l, v, ac) in kernels:
        out += f'; @launch kernel={n} grid=({g},1,1) block=(256,1,1) lds={l}\n'
    out += '.amdgcn_target "amdgcn-amd-amdhsa--gfx950"\n.text\n'
    for (n, t, g, l, v, ac) in kernels:
        out += f'.globl {n}\n.p2align 8\n.type {n},@function\n' + t + KD.format(name=n, vgpr=v, acc=ac)
    open(path, 'w').write(out)
if __name__ == '__main__':
    which = sys.argv[2].split(',')
    ks = []
    for w_ in which:
        if '=' in w_:
            k_, v_ = w_.split('='); setattr(chain, k_, int(v_))
    if 'st' in which:
        chain.STAMP = True
    if 'srt' in which:
        chain.STAMP = True; chain.RT = True
    if 'rt' in which:
        import work
        chain.STAMP = True; chain.LIGHT = True; chain.RT = True; work.WSTAMP = True
    if 'prep' in which: ks.append(('prep_kernel', prep.prep_kernel('prep_kernel'), 256, 32768, 512, 256))
    if 'gemm' in which:
        import work
        ks.append(('gemm_kernel', work.gemm_kernel('gemm_kernel'), 288, work.LDS_BYTES, 512, 256))
    if 'red' in which:
        import work
        ks.append(('red_kernel', work.red_kernel('red_kernel'), 4, 0, 512, 256))
    if 'main' in which:
        chain.MERGED = True
        ks.append(('main_kernel', chain.chain_kernel('main_kernel'), 256, chain.LDS_BYTES, 512, 256))
    if 'chain' in which: ks.append(('chain_kernel', chain.chain_kernel('chain_kernel'), 256, chain.LDS_BYTES, 512, 256))
    if 'fin' in which:
        import work
        ks.append(('fin_kernel', work.fin_kernel('fin_kernel'), 256, work.LDS_BYTES, 512, 256))
    build(sys.argv[1], ks)
```
